```python
import torch

def _softmax(x, axis=-1):
    return torch.softmax(x, dim=axis)
def _gelu(x):
    return torch.nn.functional.gelu(x, approximate="tanh")
def _silu(x):
    return torch.nn.functional.silu(x)
def _sigmoid(x):
    return torch.sigmoid(x)
def _layernorm(x, axis=-1, eps=1e-5):
    m = x.mean(dim=axis, keepdim=True)
    v = x.var(dim=axis, keepdim=True, unbiased=False)
    return (x - m) / torch.sqrt(v + eps)
def _scatter_add(tgt, idx, src, axis=0):
    return tgt.clone().index_add_(axis, idx, src)
def _segment_sum(src, seg, n):
    out = torch.zeros((n,) + src.shape[1:], dtype=src.dtype)
    return out.index_add_(0, seg, src)
def _pad(x, pw):
    flat = tuple(v for pair in reversed(pw) for v in pair)
    return torch.nn.functional.pad(x, flat)

kernel_name = 'gated_mix__gqa_block_cached__swiglu_ffn__decode'

def setup_inputs():

    _w = (lambda a: (lambda t: t.to(torch.bfloat16) if t.is_floating_point() else t)(torch.as_tensor(a)))
    def _A_setup():
        B, Sq, D = 4, 1, 512
        Hq, Hkv, Sk, Dh = 32, 8, 4096, 128
        assert Hq % Hkv == 0, (Hq, Hkv)
        return {
            "x": _w((lambda *s: torch.randn(*s, dtype=torch.bfloat16) * 0.05)(B, Sq, D)),
            "k_cache": _w((lambda *s: torch.randn(*s, dtype=torch.bfloat16) * 6.4)(B, Hkv, Sk, Dh)),
            "v_cache": _w((lambda *s: torch.randn(*s, dtype=torch.bfloat16) * 0.2)(B, Hkv, Sk, Dh)),
            "wq": _w((lambda *s: torch.randn(*s, dtype=torch.bfloat16) * 6.4)(D, Hq * Dh) * (D ** -0.5)),
            "wo": _w((lambda *s: torch.randn(*s, dtype=torch.bfloat16) * 0.2)(Hq * Dh, D) * ((Hq * Dh) ** -0.5)),
        }
    _A_in = _A_setup()

    def _B_setup():
        B, S, D, F = 4, 1, 512, 1792
        return {
            "x": _w((lambda *s: torch.randn(*s, dtype=torch.bfloat16) * 0.05)(B, S, D)),
            "w_gate": _w((lambda *s: torch.randn(*s, dtype=torch.bfloat16) * 0.05)(D, F)),
            "w_up": _w((lambda *s: torch.randn(*s, dtype=torch.bfloat16) * 0.05)(D, F)),
            "w_down": _w((lambda *s: torch.randn(*s, dtype=torch.bfloat16) * 0.05)(F, D)),
        }
    _B_in = _B_setup()

    return {
        "A_x": _A_in["x"],
        "A_k_cache": _A_in["k_cache"],
        "A_v_cache": _A_in["v_cache"],
        "A_wq": _A_in["wq"],
        "A_wo": _A_in["wo"],
        "B_x": _B_in["x"],
        "B_w_gate": _B_in["w_gate"],
        "B_w_up": _B_in["w_up"],
        "B_w_down": _B_in["w_down"],
        "gate_w": _w((lambda *s: torch.randn(*s, dtype=torch.bfloat16) * 0.05)(512) * 16.0),
    }

def reference(A_x, A_k_cache, A_v_cache, A_wq, A_wo, B_x, B_w_gate, B_w_up, B_w_down, gate_w):
    def _A_ref(x, k_cache, v_cache, wq, wo):
        B, Sq, D = x.shape
        Hq, Dh = 32, 128
        Hkv = k_cache.shape[1]
        rep = Hq // Hkv
        q = (lambda x, *d: x.permute(*d))((x @ wq).reshape(B, Sq, Hq, Dh), 0, 2, 1, 3)
        k = (lambda x, n, axis: torch.repeat_interleave(x, n, dim=axis))(k_cache, rep, axis=1)
        v = (lambda x, n, axis: torch.repeat_interleave(x, n, dim=axis))(v_cache, rep, axis=1)
        scores = torch.einsum("bhqd,bhkd->bhqk", q, k) * (Dh ** -0.5)
        p = _softmax(scores, axis=-1)
        o = torch.einsum("bhqk,bhkd->bhqd", p, v)
        return (lambda x, *d: x.permute(*d))(o, 0, 2, 1, 3).reshape(B, Sq, Hq * Dh) @ wo

    def _B_ref(x, w_gate, w_up, w_down):
        g = _silu(x @ w_gate)
        u = x @ w_up
        return (g * u) @ w_down

    x = A_x
    g = _sigmoid((x * gate_w).sum(-1, keepdims=True))
    a = _A_ref(x, A_k_cache, A_v_cache, A_wq, A_wo)
    b = _B_ref(x, B_w_gate, B_w_up, B_w_down)
    return g * a + (1 - g) * b
```

```python
import re

TRANS = ("v_exp_f32", "v_log_f32", "v_rcp_f32", "v_rsq_f32", "v_sqrt_f32", "v_sin_f32", "v_cos_f32")

def _expand(tok):
    tok = tok.strip()
    neg = tok.lstrip('-').strip('|')
    m = re.fullmatch(r'([vas])\[(\d+):(\d+)\]', neg)
    if m:
        return [(m.group(1), i) for i in range(int(m.group(2)), int(m.group(3)) + 1)]
    m = re.fullmatch(r'([vas])(\d+)', neg)
    if m:
        return [(m.group(1), int(m.group(2)))]
    if neg == 'vcc':
        return [('s', 'vcc_lo'), ('s', 'vcc_hi')]
    if neg in ('vcc_lo', 'vcc_hi'):
        return [('s', neg)]
    if neg == 'exec':
        return [('s', 'exec_lo'), ('s', 'exec_hi')]
    if neg in ('exec_lo', 'exec_hi'):
        return [('s', neg)]
    if neg == 'm0':
        return [('s', 'm0')]
    return []

def _split_ops(rest):
    out = []; cur = ''; depth = 0
    for ch in rest:
        if ch == '[': depth += 1
        if ch == ']': depth -= 1
        if ch == ',' and depth == 0:
            out.append(cur); cur = ''
        else:
            cur += ch
    out.append(cur)
    return [o.strip() for o in out]

class Ins:
    __slots__ = ("text", "op", "kind", "dst", "src", "srcC", "dpp", "trans", "states", "lds", "wide_store", "passes")
    def __init__(self, text):
        self.text = text
        t = text.split(';')[0].strip()
        parts = t.split(None, 1)
        self.op = op = parts[0]
        rest = parts[1] if len(parts) > 1 else ''
        ops = _split_ops(rest) if rest else []
        regs = []
        mods = []
        for o in ops:
            toks = o.split()
            regs.append(toks[0] if toks else '')
            mods += toks[1:]
        self.dpp = ('_dpp' in op) or any(m.startswith(('quad_perm', 'row_', 'wave_')) for m in mods)
        self.lds = 'lds' in mods
        self.trans = any(op.startswith(x) for x in TRANS)
        self.states = 1
        self.dst = []; self.src = []; self.srcC = []
        self.wide_store = False
        self.passes = 0
        if op == 's_nop':
            self.kind = 'nop'; self.states = int(rest, 0) + 1
        elif op.startswith('v_mfma'):
            self.kind = 'mfma'
            self.dst = _expand(regs[0]); self.src = _expand(regs[1]) + _expand(regs[2]); self.srcC = _expand(regs[3])
            self.passes = 8 if '32x32' in op else 4
        elif op.startswith('v_'):
            self.kind = 'valu'
            if op.startswith('v_cmp'):
                self.dst = _expand(regs[0]); self.src = sum((_expand(r) for r in regs[1:]), [])
            elif op.startswith(('v_permlane16_swap', 'v_permlane32_swap')):
                self.dst = _expand(regs[0]) + _expand(regs[1]); self.src = list(self.dst)
            elif op.startswith(('v_readfirstlane', 'v_readlane')):
                self.dst = _expand(regs[0]); self.src = sum((_expand(r) for r in regs[1:]), [])
            else:
                self.dst = _expand(regs[0]); self.src = sum((_expand(r) for r in regs[1:]), [])
                if op.startswith(('v_fmac', 'v_mac', 'v_dot2c')) or self.dpp:
                    self.src += self.dst
                if op.startswith('v_cndmask_b32') and len(regs) == 3:
                    self.src += _expand('vcc')
                if op.startswith(('v_add_co', 'v_addc_co', 'v_sub_co', 'v_subb_co')):
                    self.dst += _expand(regs[1])
        elif op.startswith(('buffer_', 'global_', 'flat_')):
            self.kind = 'vmem'
            allr = sum((_expand(r) for r in regs), [])
            if 'load' in op and not self.lds:
                self.dst = _expand(regs[0]); self.src = sum((_expand(r) for r in regs[1:]), [])
            elif 'atomic' in op and ('sc0' in mods or 'glc' in mods):
                self.dst = _expand(regs[0]); self.src = allr
            else:
                self.src = allr
                if 'store' in op and ('x4' in op or 'x3' in op):
                    self.wide_store = True
                    self.srcC = _expand(regs[0])
            if self.lds:
                self.src += [('s', 'm0')]
        elif op.startswith('ds_'):
            self.kind = 'ds'
            if op.startswith(('ds_read', 'ds_bpermute', 'ds_permute', 'ds_swizzle')) or '_rtn' in op:
                self.dst = _expand(regs[0]); self.src = sum((_expand(r) for r in regs[1:]), [])
            else:
                self.src = sum((_expand(r) for r in regs), [])
        elif op.startswith('s_'):
            self.kind = 'salu'
            if op.startswith(('s_cmp', 's_cbranch', 's_branch', 's_waitcnt', 's_barrier', 's_sleep', 's_setprio', 's_endpgm', 's_bitcmp')):
                self.src = sum((_expand(r) for r in regs), [])
            else:
                self.dst = _expand(regs[0]) if regs else []
                self.src = sum((_expand(r) for r in regs[1:]), [])
                if 'saveexec' in op:
                    self.dst += _expand('exec')
        else:
            raise ValueError("unknown instr: " + text)

def need_between(p, c):
    n = 0
    pd = set(p.dst)
    vd = {r for r in pd if r[0] in 'va'}
    sd = {r for r in pd if r[0] == 's'}
    cs = set(c.src); cd = set(c.dst); cC = set(c.srcC)
    if p.kind == 'valu':
        if vd:
            if c.kind == 'valu' and c.dpp and vd & cs: n = max(n, 2)
            if c.kind == 'valu' and c.op.startswith('v_permlane') and vd & cs: n = max(n, 2)
            if c.kind == 'mfma' and vd & (cs | cC): n = max(n, 2)
            if c.kind == 'valu' and c.op.startswith(('v_readfirstlane', 'v_readlane')) and vd & cs: n = max(n, 1)
            if p.trans and c.kind == 'valu' and vd & cs: n = max(n, 1)
        if sd:
            if c.kind == 'valu' and sd & cs: n = max(n, 4 if c.op.startswith(('v_readlane', 'v_writelane')) else 2)
            if c.kind == 'vmem' and sd & cs: n = max(n, 5)
            if c.kind == 'mfma' and any(r[1] in ('exec_lo', 'exec_hi') for r in sd): n = max(n, 4)
            if c.kind == 'salu' and sd & cs: n = max(n, 1)
    if p.kind == 'mfma':
        ps = p.passes
        t_other = {4: 8, 8: 12}[ps]
        t_part = {4: 6, 8: 10}[ps]
        t_war = {4: 3, 8: 7}[ps]
        if c.kind == 'mfma':
            if vd & cs: n = max(n, t_other)
            if vd & cC:
                if not (p.dst == c.srcC and p.passes == c.passes): n = max(n, t_part)
            if vd & cd and not (p.dst == c.srcC): n = max(n, t_part)
        elif c.kind in ('valu', 'vmem', 'ds'):
            if vd & (cs | cd): n = max(n, t_other)
        pc = {r for r in p.srcC}
        if c.kind == 'valu' and pc & cd: n = max(n, t_war)
    if p.kind == 'vmem' and p.wide_store:
        data = set(p.srcC)
        if c.kind == 'valu' and data & cd: n = max(n, 2)
        elif c.kind in ('vmem', 'ds', 'mfma') and data & cd: n = max(n, 1)
    if p.kind == 'salu':
        if ('s', 'm0') in pd and c.kind == 'vmem' and c.lds: n = max(n, 1)
        if any(r[1] in ('exec_lo', 'exec_hi') for r in sd if isinstance(r[1], str)):
            if c.kind == 'valu' and (c.dpp or c.op.startswith('v_permlane')): n = max(n, 2)
            if c.kind == 'mfma': n = max(n, 2)
    return n

class Asm:
    def __init__(self):
        self.lines = []
        self.hist = []
        self.nops = 0
    def raw(self, s):
        self.lines.append(s)
    def c(self, s):
        self.lines.append("  ; " + s)
    def label(self, name):
        self.lines.append(name + ":")
    def __call__(self, text):
        for t in text.strip().split('\n'):
            t = t.strip()
            if not t or t.startswith(';'):
                continue
            self.emit(t)
    def emit(self, text):
        ins = Ins(text)
        need = 0; dist = 0
        for p in reversed(self.hist):
            if dist >= 14: break
            k = need_between(p, ins)
            need = max(need, k - dist)
            dist += p.states
        while need > 0:
            k = min(need, 8)
            nop = Ins(f"s_nop {k-1}")
            self.lines.append("  " + nop.text)
            self.hist.append(nop)
            self.nops += k
            need -= k
        self.lines.append("  " + text)
        self.hist.append(ins)
        if len(self.hist) > 40: self.hist = self.hist[-40:]
    def flush_hazards(self, states=12):
        self.emit(f"s_nop {min(states,8)-1}")
        if states > 8: self.emit(f"s_nop {states-8-1}")
    def text(self):
        return "\n".join(self.lines) + "\n"
```

```python
import sys, os, math, struct
sys.path.insert(0, os.path.dirname(os.path.abspath(__file__)))
from asmlib import Asm

NAME = "gated_mix__gqa_block_cached__swiglu_ffn__decode_kernel"

WS_E = 0x0
WS_Q = 0x10000
WS_F = 0x20000
WS_ST = 0x30000
WS_OA = 0x100000
WS_YB = 0x200000
WS_STAMP = 0x400000
WS_DUMP = 0x500000
WS_BYTES = 0x400000

L_XS = 0x0
XP = 1056
L_GW = 0x1100
L_QF = 0x1500
L_FLAG = 0x1900
L_G = 0x1910
L_OMG = 0x1920
L_STL = 0x1A00
L_OB = 0x1B00
L_HB = 0x1C00
L_T0 = 0x2000
L_T1 = 0x6000
L_WO = 0xA000
L_WD = 0xE000
L_PART = L_T0
LDS_BYTES = 0x10000

TAGC = 0x9E3779B9
LOG2E = 1.4426950408889634
SCALE = 128 ** -0.5

def f2u(x):
    return struct.unpack("<I", struct.pack("<f", x))[0]

def hexf(x):
    return "0x%08x" % f2u(x)

class Cfg:
    stamps = False
    dump = False
    emu = False
    kprio = 0
    vprio = 0
    hprio = 3
    wtrig = "cnt"
    nt = "nt"
    wnt = "nt"
    spin_g = 20000
    spin_l = 400000
    sleep_poll = 1
    def __init__(self, **kw):
        for k, v in kw.items():
            assert hasattr(self, k), k
            setattr(self, k, v)

DPPM = "row_mask:0xf bank_mask:0xf"

def gen(cfg):
    A = Asm()
    R = A.raw
    ws_bytes = 0x800000 if (cfg.stamps or cfg.dump) else WS_BYTES
    S_X, S_K, S_V, S_WQ, S_WO, S_BX, S_WG, S_WU = 16, 18, 20, 22, 24, 26, 28, 30
    S_WD, S_GW, S_OUT, S_DBG, S_WS = 32, 34, 36, 38, 40
    sJ, sHKV, sR, sB, sS, sW = 2, 3, 4, 5, 6, 7
    sTAG = 8
    sT0, sT1, sT2, sT3 = 9, 10, 11, 12
    sCNT = 13
    sOFF = 14
    sC = 15
    SRD_A, SRD_B, SRD_WS, SRD_C, SRD_D = 44, 48, 52, 56, 60
    sKG, sHC, sJP, sCG = 64, 65, 66, 67
    sM0, sM1 = 68, 69
    sST = 72
    nstamp = [0]
    stamp_names = {"H": [], "S": []}

    def srd(d, base, nbytes):
        A(f"s_mov_b32 s{d}, s{base}")
        A(f"s_mov_b32 s{d+1}, s{base+1}")
        A(f"s_mov_b32 s{d+2}, 0x{nbytes:x}")
        A(f"s_mov_b32 s{d+3}, 0x00020000")

    role = ["S"]
    def stamp(name):
        if not cfg.stamps: return
        k = len(stamp_names[role[0]])
        assert k < 12
        stamp_names[role[0]].append(name)
        A(f"s_memrealtime s[{sST+2*k}:{sST+2*k+1}]")
        A("s_waitcnt lgkmcnt(0)")

    def write_stamps():
        if not cfg.stamps: return
        n = len(stamp_names[role[0]])
        A(f"s_mul_i32 s{sT0}, s{sJ}, 9")
        A(f"s_add_u32 s{sT0}, s{sT0}, s70")
        A(f"s_lshl_b32 s{sT0}, s{sT0}, 6")
        A(f"s_add_u32 s{sT0}, s{sT0}, 0x{WS_STAMP:x}")
        A("s_mov_b64 exec, 1")
        A(f"v_mov_b32 v1, s{sT0}")
        for k in range(n):
            A(f"v_mov_b32 v2, s{sST+2*k}")
            A(f"buffer_store_dword v2, v1, s[{SRD_WS}:{SRD_WS+3}], 0 offen offset:{4*k}")
        A("s_waitcnt vmcnt(0)")
        A("s_mov_b64 exec, -1")

    lab = [0]
    def newlab(p):
        lab[0] += 1
        return f"L_{p}_{lab[0]}"

    def poll_loop(issue, check, first_wait=None, pre_issued=False):
        L = newlab("poll"); D = newlab("done")
        A(f"s_mov_b32 s{sCNT}, {cfg.spin_g}")
        if pre_issued:
            F = newlab("first")
            first_wait()
            A(f"s_branch {F}")
        A.label(L)
        A.flush_hazards(2)
        issue()
        A("s_waitcnt vmcnt(0)")
        if pre_issued:
            A.label(F)
        vt = check()
        A(f"v_cmp_ne_u32 vcc, 0, v{vt}")
        A("s_nop 1")
        A("s_and_b64 exec, exec, vcc")
        A(f"s_cbranch_execz {D}")
        if cfg.sleep_poll: A(f"s_sleep {cfg.sleep_poll}")
        A(f"s_sub_u32 s{sCNT}, s{sCNT}, 1")
        A(f"s_cmp_lg_u32 s{sCNT}, 0")
        A(f"s_cbranch_scc1 {L}")
        A.label(D)
        A("s_mov_b64 exec, -1")

    def xlane_reduce(op, regs, tmps, steps):
        for st in steps:
            if st[0] == 'r':
                n = int(st[1:])
                for r in regs:
                    A(f"{op}_dpp v{r}, v{r}, v{r} row_ror:{n} {DPPM}")
            else:
                ins = "v_permlane16_swap_b32" if st == 'x16' else "v_permlane32_swap_b32"
                for r, t in zip(regs, tmps):
                    A(f"v_mov_b32 v{t}, v{r}")
                for r, t in zip(regs, tmps):
                    A(f"{ins} v{r}, v{t}")
                for r, t in zip(regs, tmps):
                    A(f"{op} v{r}, v{r}, v{t}")

    hdr = open("gated_mix__gqa_block_cached__swiglu_ffn__decode.s.ref").read().split("\n")
    for l in hdr:
        if l.startswith("; @launch"): break
        if l.startswith(";"): R(l)
    R(f"; @launch grid=(256,1,1) block=(576,1,1) lds={LDS_BYTES}")
    R('.amdgcn_target "amdgcn-amd-amdhsa--gfx950"')
    R(".text"); R(f".globl {NAME}"); R(".p2align 8"); R(f".type {NAME},@function"); R(f"{NAME}:")

    A("s_cmp_ge_u32 s2, 256")
    A("s_cbranch_scc1 L_end")
    if cfg.stamps:
        A(f"s_memrealtime s[{sST}:{sST+1}]")
        stamp_names["H"].append("start"); stamp_names["S"].append("start")
    A("s_load_dwordx16 s[16:31], s[0:1], 0")
    A("s_load_dwordx8 s[32:39], s[0:1], 64")
    A("s_load_dwordx2 s[40:41], s[0:1], 96")
    A("v_lshrrev_b32 v1, 6, v0")
    A("v_and_b32 v0, 63, v0")
    A(f"s_and_b32 s{sHKV}, s2, 7")
    A(f"v_readfirstlane_b32 s{sW}, v1")
    A(f"s_lshr_b32 s{sR}, s2, 3")
    A(f"s_lshr_b32 s{sB}, s{sR}, 3")
    A(f"s_and_b32 s{sS}, s{sR}, 7")
    A(f"s_lshr_b32 s{sKG}, s{sR}, 1")
    A(f"s_lshr_b32 s{sHC}, s{sKG}, 2")
    A(f"s_and_b32 s{sJP}, s{sKG}, 3")
    A(f"s_and_b32 s{sCG}, s{sR}, 1")
    A(f"s_lshl_b32 s{sT0}, s{sHKV}, 4")
    A(f"s_add_u32 s{sKG}, s{sKG}, s{sT0}")
    if cfg.stamps: A(f"s_mov_b32 s70, s{sW}")
    A(f"s_cmp_eq_u32 s{sW}, 0")
    A("s_cbranch_scc1 L_helper")

    role[0] = "S"
    A("s_barrier")
    A(f"s_sub_u32 s{sW}, s{sW}, 1")
    vK, vV = 1, 2
    A("v_lshrrev_b32 v3, 2, v0")
    A("v_and_b32 v3, 3, v3")
    A("v_lshlrev_b32 v3, 8, v3")
    A("v_lshrrev_b32 v4, 4, v0")
    A("v_lshlrev_b32 v4, 6, v4")
    A("v_and_b32 v5, 3, v0")
    A("v_lshlrev_b32 v5, 4, v5")
    A(f"v_or_b32 v{vK}, v3, v4")
    A(f"v_or_b32 v{vK}, v{vK}, v5")
    A(f"v_lshlrev_b32 v{vV}, 4, v0")
    A(f"s_lshl_b32 s{sT0}, s{sB}, 3")
    A(f"s_add_u32 s{sT0}, s{sT0}, s{sHKV}")
    A(f"s_lshl_b32 s{sT0}, s{sT0}, 20")
    A(f"s_lshl_b32 s{sT1}, s{sW}, 17")
    A(f"s_add_u32 s{sT0}, s{sT0}, s{sT1}")
    A(f"s_lshl_b32 s{sT1}, s{sS}, 10")
    A(f"s_add_u32 s{sOFF}, s{sT0}, s{sT1}")
    A(f"s_mov_b32 s{sT2}, s{sOFF}")
    A("s_waitcnt lgkmcnt(0)")
    srd(SRD_A, S_K, 32 << 20)
    srd(SRD_B, S_V, 32 << 20)
    srd(SRD_WS, S_WS, ws_bytes)
    stamp("args")
    if cfg.kprio: A(f"s_setprio {cfg.kprio}")
    for u in range(16):
        A(f"buffer_load_dwordx4 a[{4*u}:{4*u+3}], v{vK}, s[{SRD_A}:{SRD_A+3}], s{sOFF} offen {cfg.nt}")
        if u < 15: A(f"s_add_u32 s{sOFF}, s{sOFF}, 0x2000")
    if cfg.kprio != cfg.vprio: A(f"s_setprio {cfg.vprio}")
    VB = 40
    for u in range(16):
        A(f"buffer_load_dwordx4 v[{VB+4*u}:{VB+4*u+3}], v{vV}, s[{SRD_B}:{SRD_B+3}], s{sT2} offen {cfg.nt}")
        if u < 15: A(f"s_add_u32 s{sT2}, s{sT2}, 0x2000")
    if cfg.vprio: A("s_setprio 0")
    A(f"v_mov_b32 v1, 0x{L_FLAG:x}")
    A("v_mov_b32 v2, 1")
    A("s_mov_b64 exec, 1")
    A("ds_add_u32 v1, v2 offset:8")
    A("s_mov_b64 exec, -1")
    stamp("issued")
    QF = 4
    A(f"v_lshlrev_b32 v3, 4, v0")
    Lq = newlab("qspin"); Lqd = newlab("qdone")
    A(f"s_mov_b32 s{sCNT}, {cfg.spin_l}")
    A.label(Lq)
    A("ds_read_b64 v[8:9], v1")
    A(f"ds_read_b128 v[{QF}:{QF+3}], v3 offset:{L_QF}")
    A("s_waitcnt lgkmcnt(0)")
    A(f"v_readfirstlane_b32 s{sT0}, v8")
    A(f"v_readfirstlane_b32 s{sTAG}, v9")
    A(f"s_cmp_lg_u32 s{sT0}, 0")
    A(f"s_cbranch_scc1 {Lqd}")
    A("s_sleep 2")
    A(f"s_sub_u32 s{sCNT}, s{sCNT}, 1")
    A(f"s_cmp_lg_u32 s{sCNT}, 0")
    A(f"s_cbranch_scc1 {Lq}")
    A.label(Lqd)
    stamp("qready")
    DQ = [8, 12, 16, 20]
    SB = 24
    A("s_waitcnt vmcnt(16)")
    stamp("karr")
    def qk_mfma(u):
        d = DQ[u % 4]
        A(f"v_mfma_f32_16x16x32_bf16 v[{d}:{d+3}], a[{4*u}:{4*u+3}], v[{QF}:{QF+3}], 0")
    def qk_dpp(u, k):
        d = DQ[u % 4]
        if k == 0:
            A(f"v_mov_b32_dpp v{SB+u}, v{d} quad_perm:[0,0,0,0] {DPPM}")
        else:
            A(f"v_add_f32_dpp v{SB+u}, v{d+k}, v{SB+u} quad_perm:[{k},{k},{k},{k}] {DPPM}")
    qk_mfma(0); qk_mfma(1)
    for p in range(8):
        a, b_ = 2 * p, 2 * p + 1
        if p < 7: qk_mfma(a + 2)
        if p < 7: qk_mfma(b_ + 2)
        for k in range(4):
            qk_dpp(a, k); qk_dpp(b_, k)
    if cfg.dump:
        A(f"s_lshl_b32 s{sT0}, s{sJ}, 3"); A(f"s_add_u32 s{sT0}, s{sT0}, s{sW}"); A(f"s_lshl_b32 s{sT0}, s{sT0}, 12")
        A(f"s_add_u32 s{sT0}, s{sT0}, 0x{WS_DUMP:x}")
        A("v_lshlrev_b32 v3, 2, v0")
        for u in range(16):
            A(f"buffer_store_dword v{SB+u}, v3, s[{SRD_WS}:{SRD_WS+3}], s{sT0} offen offset:{256*u}")
    vM, vL, vT = 2, 3, 1
    if cfg.emu:
        A(f"s_mov_b32 s{sC}, {hexf(SCALE)}")
        A(f"s_mov_b32 s{sT0}, 0xffff0000")
        for p in range(8):
            a, b_ = SB + 2 * p, SB + 2 * p + 1
            A(f"v_cvt_pk_bf16_f32 v{a}, v{a}, v{b_}")
        for p in range(8):
            a, b_ = SB + 2 * p, SB + 2 * p + 1
            A(f"v_and_b32 v{b_}, s{sT0}, v{a}")
            A(f"v_lshlrev_b32 v{a}, 16, v{a}")
        for u in range(16):
            A(f"v_mul_f32 v{SB+u}, s{sC}, v{SB+u}")
        for p in range(8):
            a, b_ = SB + 2 * p, SB + 2 * p + 1
            A(f"v_cvt_pk_bf16_f32 v{a}, v{a}, v{b_}")
        for p in range(8):
            a, b_ = SB + 2 * p, SB + 2 * p + 1
            A(f"v_and_b32 v{b_}, s{sT0}, v{a}")
            A(f"v_lshlrev_b32 v{a}, 16, v{a}")
        A(f"s_mov_b32 s{sC}, {hexf(LOG2E)}")
    else:
        A(f"s_mov_b32 s{sC}, {hexf(SCALE*LOG2E)}")
    A(f"v_max3_f32 v{vM}, v{SB}, v{SB+1}, v{SB+2}")
    A(f"v_max3_f32 v{vT}, v{SB+3}, v{SB+4}, v{SB+5}")
    A(f"v_max3_f32 v{vM}, v{vM}, v{SB+6}, v{SB+7}")
    A(f"v_max3_f32 v{vT}, v{vT}, v{SB+8}, v{SB+9}")
    A(f"v_max3_f32 v{vM}, v{vM}, v{SB+10}, v{SB+11}")
    A(f"v_max3_f32 v{vT}, v{vT}, v{SB+12}, v{SB+13}")
    A(f"v_max3_f32 v{vM}, v{vM}, v{SB+14}, v{SB+15}")
    A(f"v_max_f32 v{vM}, v{vM}, v{vT}")
    xlane_reduce("v_max_f32", [vM], [vT], ["x16", "x32"])
    A(f"v_mul_f32 v{vM}, s{sC}, v{vM}")
    for u in range(16):
        A(f"v_fma_f32 v{SB+u}, v{SB+u}, s{sC}, -v{vM}")
    for u in range(16):
        A(f"v_exp_f32 v{SB+u}, v{SB+u}")
    A(f"v_add_f32 v{vL}, v{SB}, v{SB+1}")
    A(f"v_add_f32 v{vT}, v{SB+2}, v{SB+3}")
    for u in range(4, 16, 2):
        A(f"v_add_f32 v{vL}, v{vL}, v{SB+u}")
        A(f"v_add_f32 v{vT}, v{vT}, v{SB+u+1}")
    A(f"v_add_f32 v{vL}, v{vL}, v{vT}")
    for k in range(8):
        A(f"v_cvt_pk_bf16_f32 v{SB+k}, v{SB+2*k}, v{SB+2*k+1}")
    xlane_reduce("v_add_f32", [vL], [vT], ["x16", "x32"])
    A(f"v_lshlrev_b32 v{vT}, 4, v0")
    A(f"s_lshl_b32 s{sT0}, s{sW}, 3")
    A(f"s_add_u32 s{sT0}, s{sT0}, 0x{L_STL:x}")
    A(f"v_add_u32 v{vT}, s{sT0}, v{vT}")
    A("s_mov_b64 exec, 0x1111")
    A(f"ds_write_b64 v{vT}, v[{vM}:{vL}]")
    A("s_mov_b64 exec, -1")
    stamp("smax")
    PF = [SB, SB + 4]
    TQ = [8, 12, 16, 20]
    A(f"s_mov_b32 s{sT0}, 0x05040100")
    A(f"s_mov_b32 s{sT1}, 0x07060302")
    for blk in range(2):
        A(f"s_waitcnt vmcnt({8 if blk == 0 else 0})" if not cfg.dump else "s_waitcnt vmcnt(0)")
        if blk == 1: stamp("varr")
        def perms(f):
            dw, hf = f >> 1, f & 1
            t = TQ[f % 4]
            sel = sT1 if hf else sT0
            for q in range(4):
                lo = VB + 4 * (8 * blk + 2 * q) + dw
                hi = VB + 4 * (8 * blk + 2 * q + 1) + dw
                A(f"v_perm_b32 v{t+q}, v{hi}, v{lo}, s{sel}")
        def pv_mfma(f):
            t = TQ[f % 4]
            c = "0" if blk == 0 else f"a[{4*f}:{4*f+3}]"
            A(f"v_mfma_f32_16x16x32_bf16 a[{4*f}:{4*f+3}], v[{PF[blk]}:{PF[blk]+3}], v[{t}:{t+3}], {c}")
        perms(0)
        for f in range(8):
            if f < 7: perms(f + 1)
            pv_mfma(f)
    A(f"v_lshlrev_b32 v{vT}, 2, v0")
    A(f"s_lshl_b32 s{sT0}, s{sW}, 11")
    A(f"s_add_u32 s{sT0}, s{sT0}, 0x{L_PART:x}")
    A(f"v_add_u32 v{vT}, s{sT0}, v{vT}")
    for f in range(0, 8, 2):
        A(f"ds_write2st64_b32 v{vT}, a{4*f}, a{4*(f+1)} offset0:{f} offset1:{f+1}")
    A("s_waitcnt lgkmcnt(0)")
    stamp("pvdone")
    A("s_barrier")
    vGA, vGS = 4, 5
    Lnc = newlab("nocomb")
    A(f"s_cmp_ge_u32 s{sW}, 4")
    A(f"s_cbranch_scc1 {Lnc}")
    PB = 40
    A("v_lshrrev_b32 v8, 4, v0")
    A("v_lshlrev_b32 v8, 6, v8")
    A("v_and_b32 v9, 7, v0")
    A("v_lshlrev_b32 v9, 3, v9")
    A("v_add_u32 v8, v8, v9")
    A(f"ds_read_b64 v[10:11], v8 offset:{L_STL}")
    A("v_lshlrev_b32 v9, 2, v0")
    A(f"s_lshl_b32 s{sT0}, s{sW}, 9")
    A(f"s_add_u32 s{sT0}, s{sT0}, 0x{L_PART:x}")
    A(f"v_add_u32 v9, s{sT0}, v9")
    for w in range(8):
        A(f"ds_read2st64_b32 v[{PB+2*w}:{PB+2*w+1}], v9 offset0:{8*w} offset1:{8*w+1}")
    A(f"s_lshl_b32 s{sT0}, s{sHKV}, 5")
    A(f"s_add_u32 s{sT0}, s{sT0}, s{sR}")
    A(f"s_lshl_b32 s{sT1}, s{sT0}, 12")
    A(f"s_lshl_b32 s{sT2}, s{sW}, 10")
    A(f"s_add_u32 s{sT1}, s{sT1}, s{sT2}")
    A(f"s_add_u32 s{sT1}, s{sT1}, 0x{WS_OA:x}")
    A("v_lshlrev_b32 v12, 4, v0")
    A("s_waitcnt lgkmcnt(8)")
    A("v_mov_b32 v13, v10")
    xlane_reduce("v_max_f32", [13], [None], ["r1", "r2", "r4"])
    A("v_sub_f32 v14, v10, v13")
    A("v_exp_f32 v14, v14")
    A("v_mul_f32 v15, v11, v14")
    xlane_reduce("v_add_f32", [15], [None], ["r1", "r2", "r4"])
    A("s_waitcnt lgkmcnt(0)")
    A(f"v_mul_f32_dpp v16, v14, v{PB} row_newbcast:0 {DPPM}")
    A(f"v_mul_f32_dpp v18, v14, v{PB+1} row_newbcast:0 {DPPM}")
    A(f"v_mul_f32_dpp v20, v14, v{PB+2} row_newbcast:1 {DPPM}")
    A(f"v_mul_f32_dpp v21, v14, v{PB+3} row_newbcast:1 {DPPM}")
    for w in range(2, 8):
        d0, d1 = (16, 18) if w % 2 == 0 else (20, 21)
        A(f"v_fmac_f32_dpp v{d0}, v14, v{PB+2*w} row_newbcast:{w} {DPPM}")
        A(f"v_fmac_f32_dpp v{d1}, v14, v{PB+2*w+1} row_newbcast:{w} {DPPM}")
    A(f"v_mov_b32 v17, s{sTAG}")
    A(f"v_mov_b32 v19, s{sTAG}")
    A("v_add_f32 v16, v16, v20")
    A("v_add_f32 v18, v18, v21")
    A(f"buffer_store_dwordx4 v[16:19], v12, s[{SRD_WS}:{SRD_WS+3}], s{sT1} offen sc1")
    Lns = newlab("nostat")
    A(f"s_cmp_lg_u32 s{sW}, 0")
    A(f"s_cbranch_scc1 {Lns}")
    A(f"s_lshl_b32 s{sT0}, s{sT0}, 6")
    A(f"s_add_u32 s{sT0}, s{sT0}, 0x{WS_ST:x}")
    A("v_mov_b32 v20, v13")
    A(f"v_mov_b32 v21, s{sTAG}")
    A("v_mov_b32 v22, v15")
    A(f"v_mov_b32 v23, s{sTAG}")
    A("s_mov_b32 exec_lo, 0x00010001")
    A("s_mov_b32 exec_hi, 0x00010001")
    A(f"buffer_store_dwordx4 v[20:23], v0, s[{SRD_WS}:{SRD_WS+3}], s{sT0} offen sc1")
    A("s_mov_b64 exec, -1")
    A.label(Lns)
    A.label(Lnc)
    stamp("pubA")
    A(f"s_lshr_b32 s{sT0}, s{sW}, 1")
    A(f"s_lshl_b32 s{sT0}, s{sT0}, 3")
    A(f"s_lshl_b32 s{sT1}, s{sHKV}, 5")
    A(f"s_add_u32 s{sT0}, s{sT0}, s{sT1}")
    A("v_lshrrev_b32 v8, 3, v0")
    A(f"v_add_u32 v8, s{sT0}, v8")
    A(f"v_lshlrev_b32 v{vGS}, 6, v8")
    A(f"v_lshlrev_b32 v{vGA}, 12, v8")
    A("v_and_b32 v9, 7, v0")
    A("v_lshlrev_b32 v9, 4, v9")
    A(f"v_add_u32 v{vGA}, v{vGA}, v9")
    A(f"s_and_b32 s{sT0}, s{sW}, 1")
    A(f"s_lshl_b32 s{sT0}, s{sT0}, 7")
    A(f"s_lshl_b32 s{sT1}, s{sJP}, 10")
    A(f"s_add_u32 s{sT0}, s{sT0}, s{sT1}")
    A(f"s_lshl_b32 s{sT1}, s{sHC}, 8")
    A(f"s_add_u32 s{sT0}, s{sT0}, s{sT1}")
    A(f"s_add_u32 s{sT2}, s{sT0}, 0x{WS_OA:x}")
    A(f"s_lshl_b32 s{sT3}, s{sHC}, 4")
    A(f"s_add_u32 s{sT3}, s{sT3}, 0x{WS_ST:x}")
    def g_issue():
        A(f"buffer_load_dwordx4 v[8:11], v{vGA}, s[{SRD_WS}:{SRD_WS+3}], s{sT2} offen sc1")
        A(f"buffer_load_dwordx4 v[12:15], v{vGS}, s[{SRD_WS}:{SRD_WS+3}], s{sT3} offen sc1")
    def g_check():
        A(f"v_xor_b32 v16, s{sTAG}, v9")
        A(f"v_xor_b32 v17, s{sTAG}, v11")
        A(f"v_xor_b32 v18, s{sTAG}, v13")
        A(f"v_xor_b32 v19, s{sTAG}, v15")
        A("v_or3_b32 v16, v16, v17, v18")
        A("v_or_b32 v16, v16, v19")
        return 16
    poll_loop(g_issue, g_check)
    stamp("gathA")
    A("v_mov_b32 v16, v12")
    xlane_reduce("v_max_f32", [16], [17], ["r8", "x16", "x32"])
    A("v_sub_f32 v18, v12, v16")
    A("v_exp_f32 v18, v18")
    A("s_nop 0")
    A("v_mul_f32 v8, v8, v18")
    A("v_mul_f32 v10, v10, v18")
    A("v_mul_f32 v14, v14, v18")
    xlane_reduce("v_add_f32", [8, 10, 14], [20, 21, 22], ["r8", "x16", "x32"])
    A("v_rcp_f32 v14, v14")
    A("v_lshrrev_b32 v16, 1, v0")
    A("v_and_b32 v16, 3, v16")
    A("v_lshlrev_b32 v16, 4, v16")
    A("v_and_b32 v17, 1, v0")
    A("v_lshlrev_b32 v17, 2, v17")
    A("v_add_u32 v16, v16, v17")
    A(f"s_lshr_b32 s{sT0}, s{sW}, 1")
    A(f"s_lshl_b32 s{sT0}, s{sT0}, 6")
    A(f"s_and_b32 s{sT1}, s{sW}, 1")
    A(f"s_lshl_b32 s{sT1}, s{sT1}, 3")
    A(f"s_add_u32 s{sT0}, s{sT0}, s{sT1}")
    A(f"s_add_u32 s{sT0}, s{sT0}, 0x{L_OB:x}")
    A(f"v_add_u32 v16, s{sT0}, v16")
    A("v_mul_f32 v8, v8, v14")
    A("v_mul_f32 v10, v10, v14")
    A("v_cvt_pk_bf16_f32 v8, v8, v10")
    A("s_mov_b64 exec, 0xff")
    A("ds_write_b32 v16, v8")
    A("s_mov_b64 exec, -1")
    A("v_and_b32 v20, 3, v0")
    A("v_lshrrev_b32 v21, 4, v0")
    A("v_lshlrev_b32 v22, 6, v20")
    A("v_lshlrev_b32 v23, 4, v21")
    A(f"v_add_u32 v22, v22, v23")
    A("v_lshlrev_b32 v23, 5, v20")
    A("v_lshlrev_b32 v24, 3, v21")
    A("v_add_u32 v23, v23, v24")
    A("v_lshrrev_b32 v24, 2, v0")
    A("v_and_b32 v25, 7, v24")
    A("v_lshlrev_b32 v25, 1, v25")
    A("v_lshrrev_b32 v26, 1, v20")
    A(f"s_lshl_b32 s{sT0}, s{sW}, 2")
    A(f"v_add_u32 v26, s{sT0}, v26")
    A("v_xor_b32 v26, v26, v25")
    A("v_lshlrev_b32 v26, 4, v26")
    A("v_lshlrev_b32 v24, 9, v24")
    A("v_add_u32 v24, v24, v26")
    A("v_and_b32 v26, 1, v20")
    A("v_lshlrev_b32 v26, 3, v26")
    A("v_add_u32 v24, v24, v26")
    A("v_xor_b32 v25, 32, v24")
    A("v_lshrrev_b32 v26, 1, v21")
    A("v_lshlrev_b32 v26, 9, v26")
    A("v_and_b32 v27, 15, v0")
    A("v_lshlrev_b32 v27, 5, v27")
    A("v_add_u32 v26, v26, v27")
    A("v_and_b32 v27, 1, v21")
    A("v_lshlrev_b32 v27, 4, v27")
    A("v_add_u32 v26, v26, v27")
    A(f"s_lshl_b32 s{sT0}, s{sKG}, 14")
    A(f"s_lshl_b32 s{sT1}, s{sCG}, 13")
    A(f"s_add_u32 s{sT0}, s{sT0}, s{sT1}")
    A(f"s_lshl_b32 s{sT1}, s{sW}, 10")
    A(f"s_add_u32 s{sT0}, s{sT0}, s{sT1}")
    A(f"s_add_u32 s{sT0}, s{sT0}, 0x{WS_YB:x}")
    A("s_mov_b32 s68, 0xffff0000")
    A("s_mov_b32 s69, 0xffff0000")
    A("s_waitcnt lgkmcnt(0)")
    A("s_barrier")
    stamp("B2")
    A(f"ds_read_b128 v[8:11], v22 offset:{L_OB}")
    A(f"ds_read_b64_tr_b16 v[40:41], v24 offset:{L_WO}")
    A(f"ds_read_b64_tr_b16 v[42:43], v24 offset:{L_WO+8192}")
    A(f"ds_read_b64_tr_b16 v[44:45], v25 offset:{L_WO}")
    A(f"ds_read_b64_tr_b16 v[46:47], v25 offset:{L_WO+8192}")
    A(f"ds_read_b64 v[12:13], v23 offset:{L_HB}")
    A(f"ds_read_b64_tr_b16 v[48:49], v24 offset:{L_WD}")
    A(f"ds_read_b64_tr_b16 v[50:51], v25 offset:{L_WD}")
    A(f"v_mov_b32 v27, 0x{L_G:x}")
    A("ds_read_b128 v[28:31], v27")
    A("ds_read_b128 v[32:35], v27 offset:16")
    A("s_waitcnt lgkmcnt(5)")
    A("v_mfma_f32_16x16x32_bf16 v[52:55], v[8:11], v[40:43], 0")
    A("v_mfma_f32_16x16x32_bf16 v[56:59], v[8:11], v[44:47], 0")
    A("s_waitcnt lgkmcnt(2)")
    A("v_mfma_f32_16x16x16_bf16 v[60:63], v[12:13], v[48:49], 0")
    A("v_mfma_f32_16x16x16_bf16 v[64:67], v[12:13], v[50:51], 0")
    A("s_waitcnt lgkmcnt(0)")
    for r in range(4):
        A(f"v_mul_f32 v{52+r}, v{52+r}, v{28+r}")
    for r in range(4):
        A(f"v_mul_f32 v{56+r}, v{56+r}, v{28+r}")
    for r in range(4):
        A(f"v_fmac_f32 v{52+r}, v{60+r}, v{32+r}")
    for r in range(4):
        A(f"v_fmac_f32 v{56+r}, v{64+r}, v{32+r}")
    A("s_mov_b32 vcc_lo, 0")
    A("s_mov_b32 vcc_hi, -1")
    for r in range(4):
        A(f"v_cndmask_b32 v{52+r}, v{52+r}, v{56+r}, vcc")
    A("v_cndmask_b32 v8, v52, v54, s[68:69]")
    A("v_cndmask_b32 v10, v53, v55, s[68:69]")
    A(f"v_mov_b32 v9, s{sTAG}")
    A(f"v_mov_b32 v11, s{sTAG}")
    A(f"buffer_store_dwordx4 v[8:11], v26, s[{SRD_WS}:{SRD_WS+3}], s{sT0} offen sc1")
    stamp("pubB")
    write_stamps()
    A("s_endpgm")

    A.label("L_helper")
    role[0] = "H"
    A.hist = []
    A(f"s_setprio {cfg.hprio}")
    A(f"v_mov_b32 v1, 0x{L_FLAG:x}")
    A("v_mov_b32 v2, 0")
    A("v_mov_b32 v3, 0")
    A("ds_write_b64 v1, v[2:3]")
    A("ds_write_b32 v1, v2 offset:8")
    A("s_waitcnt lgkmcnt(0)")
    A("s_barrier")
    srd(SRD_WS, S_WS, ws_bytes)
    srd(SRD_A, S_X, 4096)
    srd(SRD_B, S_WQ, 512 * 4096 * 2)
    stamp("args")
    A("v_mov_b32 v3, 0")
    A(f"buffer_load_dword v2, v3, s[{SRD_WS}:{SRD_WS+3}], 0 offen sc1")
    A("v_lshlrev_b32 v4, 4, v0")
    for b in range(4):
        A(f"s_mov_b32 m0, 0x{L_XS + 32*b:x}")
        A(f"buffer_load_dwordx4 v4, s[{SRD_A}:{SRD_A+3}], 0 offen offset:{1024*b} lds")
    A("v_lshrrev_b32 v5, 1, v0")
    A("v_and_b32 v6, 1, v0")
    A("v_lshlrev_b32 v6, 4, v6")
    A("v_lshlrev_b32 v7, 13, v5")
    A("v_add_u32 v7, v7, v6")
    A(f"s_lshl_b32 s{sT0}, s{sHKV}, 10")
    A(f"s_lshl_b32 s{sT1}, s{sR}, 5")
    A(f"s_add_u32 s{sOFF}, s{sT0}, s{sT1}")
    for t in range(16):
        A(f"s_mov_b32 m0, 0x{L_T0 + 1024*t:x}")
        A(f"buffer_load_dwordx4 v7, s[{SRD_B}:{SRD_B+3}], s{sOFF} offen {cfg.wnt} lds")
        if t < 15: A(f"s_add_u32 s{sOFF}, s{sOFF}, 0x40000")
    srd(SRD_C, S_GW, 1024)
    A(f"s_mov_b32 m0, 0x{L_GW:x}")
    A(f"buffer_load_dwordx4 v4, s[{SRD_C}:{SRD_C+3}], 0 offen lds")
    Lnf = newlab("noffn"); Lf2 = newlab("ffn2")
    A(f"s_cmp_ge_u32 s{sR}, 28")
    A(f"s_cbranch_scc1 {Lnf}")
    A(f"s_cmp_ge_u32 s{sHKV}, 4")
    A(f"s_cselect_b32 s{SRD_D}, s{S_WU}, s{S_WG}")
    A(f"s_cselect_b32 s{SRD_D+1}, s{S_WU+1}, s{S_WG+1}")
    A(f"s_mov_b32 s{SRD_D+2}, 0x{512*1792*2:x}")
    A(f"s_mov_b32 s{SRD_D+3}, 0x00020000")
    A(f"s_and_b32 s{sT0}, s{sHKV}, 3")
    A(f"s_mul_i32 s{sT0}, s{sT0}, 28")
    A(f"s_add_u32 s{sT0}, s{sT0}, s{sR}")
    A(f"s_lshl_b32 s{sOFF}, s{sT0}, 5")
    A(f"s_mov_b32 s{sT1}, 3584")
    A(f"v_mul_lo_u32 v8, v5, s{sT1}")
    A("v_add_u32 v8, v8, v6")
    for t in range(16):
        A(f"s_mov_b32 m0, 0x{L_T1 + 1024*t:x}")
        A(f"buffer_load_dwordx4 v8, s[{SRD_D}:{SRD_D+3}], s{sOFF} offen {cfg.wnt} lds")
        if t < 15: A(f"s_add_u32 s{sOFF}, s{sOFF}, 0x{32*3584:x}")
    A.label(Lnf)
    stamp("issued")
    hasF = f"s_cmp_lt_u32 s{sR}, 28"
    def wait_vm(n_noffn, n_ffn):
        La = newlab("wa"); Lb = newlab("wb")
        A(hasF)
        A(f"s_cbranch_scc1 {La}")
        A(f"s_waitcnt vmcnt({n_noffn})")
        A(f"s_branch {Lb}")
        A.label(La)
        A(f"s_waitcnt vmcnt({n_ffn})")
        A.label(Lb)
    A("v_and_b32 v9, 3, v0")
    A(f"v_mul_u32_u24 v9, {XP}, v9")
    A("v_lshrrev_b32 v10, 4, v0")
    A("v_lshlrev_b32 v10, 3, v10")
    A("v_add_u32 v9, v9, v10")
    A("v_lshlrev_b32 v11, 3, v0")
    wait_vm(17, 33)
    A(f"v_readfirstlane_b32 s{sTAG}, v2")
    A(f"s_add_u32 s{sTAG}, s{sTAG}, 0x{TAGC:x}")
    for t in range(16):
        A(f"ds_read2_b64 a[{4*t}:{4*t+3}], v9 offset0:{8*t} offset1:{8*t+4}")
    A(f"v_mov_b32 v12, s{sTAG}")
    A(f"ds_write_b32 v1, v12 offset:4")

    def tile_mfma(lbase, acc0, acc1):
        def rd(t):
            A(f"ds_read_b64_tr_b16 v[{40+4*t}:{41+4*t}], v11 offset:{lbase + 1024*t}")
            A(f"ds_read_b64_tr_b16 v[{42+4*t}:{43+4*t}], v11 offset:{lbase + 1024*t + 512}")
        for t in range(6): rd(t)
        for t in range(16):
            rem = min(16, t + 6) - (t + 1)
            A(f"s_waitcnt lgkmcnt({2*rem})")
            acc = acc0 if t % 2 == 0 else acc1
            c = "0" if t < 2 else f"v[{acc}:{acc+3}]"
            A(f"v_mfma_f32_16x16x32_bf16 v[{acc}:{acc+3}], v[{40+4*t}:{43+4*t}], a[{4*t}:{4*t+3}], {c}")
            if t + 6 < 16: rd(t + 6)
        for r in range(4):
            A(f"v_add_f32 v{acc0+r}, v{acc0+r}, v{acc1+r}")

    def tile_publish(acc, vaddr, soff):
        A(f"v_cvt_pk_bf16_f32 v{acc}, v{acc}, v{acc+1}")
        A(f"v_cvt_pk_bf16_f32 v{acc+2}, v{acc+2}, v{acc+3}")
        A(f"v_mov_b32 v{acc+1}, s{sTAG}")
        A(f"v_mov_b32 v{acc+3}, s{sTAG}")
        A("s_mov_b32 exec_lo, 0x000f000f")
        A("s_mov_b32 exec_hi, 0x000f000f")
        A(f"buffer_store_dwordx4 v[{acc}:{acc+3}], v{vaddr}, s[{SRD_WS}:{SRD_WS+3}], s{soff} offen sc1")
        A("s_mov_b64 exec, -1")

    A("v_and_b32 v13, 3, v0")
    A("v_lshrrev_b32 v14, 4, v0")
    A("v_lshlrev_b32 v14, 4, v14")
    A("v_lshlrev_b32 v15, 11, v13")
    A("v_add_u32 v15, v15, v14")
    A(f"v_mul_u32_u24 v13, 7168, v13")
    A("v_add_u32 v13, v13, v14")
    A(f"s_lshl_b32 s{sT0}, s{sHKV}, 13")
    A(f"s_lshl_b32 s{sT1}, s{sR}, 6")
    A(f"s_add_u32 s{sT0}, s{sT0}, s{sT1}")
    A(f"s_add_u32 s{sT2}, s{sT0}, 0x{WS_Q:x}")
    A("s_waitcnt lgkmcnt(0)")
    wait_vm(1, 17)
    stamp("tile")
    tile_mfma(L_T0, 16, 20)
    tile_publish(16, 15, sT2)
    stamp("pubQ")
    A("v_lshrrev_b32 v24, 2, v0")
    A("v_and_b32 v24, 3, v24")
    A("v_lshlrev_b32 v24, 9, v24")
    A("v_lshrrev_b32 v25, 4, v0")
    A("v_lshlrev_b32 v25, 7, v25")
    A("v_add_u32 v24, v24, v25")
    A("v_and_b32 v25, 3, v0")
    A("v_lshlrev_b32 v25, 5, v25")
    A("v_add_u32 v24, v24, v25")
    A(f"s_lshl_b32 s{sT0}, s{sHKV}, 13")
    A(f"s_lshl_b32 s{sT1}, s{sB}, 11")
    A(f"s_add_u32 s{sT0}, s{sT0}, s{sT1}")
    A(f"s_add_u32 s{sT3}, s{sT0}, 0x{WS_Q:x}")
    def q_issue():
        A(f"buffer_load_dwordx4 v[28:31], v24, s[{SRD_WS}:{SRD_WS+3}], s{sT3} offen sc1")
        A(f"buffer_load_dwordx4 v[32:35], v24, s[{SRD_WS}:{SRD_WS+3}], s{sT3} offen offset:16 sc1")
    q_issue()
    Lnf2 = newlab("noffn2")
    A(f"s_cmp_ge_u32 s{sR}, 28")
    A(f"s_cbranch_scc1 {Lnf2}")
    A("s_waitcnt vmcnt(3)")
    tile_mfma(L_T1, 16, 20)
    A(f"s_and_b32 s{sT0}, s{sHKV}, 3")
    A(f"s_mul_i32 s{sT0}, s{sT0}, 28")
    A(f"s_add_u32 s{sT0}, s{sT0}, s{sR}")
    A(f"s_lshl_b32 s{sT0}, s{sT0}, 6")
    A(f"s_lshr_b32 s{sT1}, s{sHKV}, 2")
    A(f"s_mul_i32 s{sT1}, s{sT1}, 28672")
    A(f"s_add_u32 s{sT0}, s{sT0}, s{sT1}")
    A(f"s_add_u32 s{sT2}, s{sT0}, 0x{WS_F:x}")
    tile_publish(16, 13, sT2)
    A.label(Lnf2)
    A.hist = []
    A("s_nop 7")
    A("s_waitcnt vmcnt(3)")
    A("v_lshrrev_b32 v10, 4, v0")
    A("v_lshlrev_b32 v10, 3, v10")
    A(f"v_add_u32 v26, 0x{L_GW:x}, v10")
    for t in range(16):
        A(f"ds_read2_b64 v[{40+4*t}:{43+4*t}], v26 offset0:{8*t} offset1:{8*t+4}")
    A("s_waitcnt lgkmcnt(0)")
    for t in range(16):
        acc = 16 if t % 2 == 0 else 20
        c = "0" if t < 2 else f"v[{acc}:{acc+3}]"
        A(f"v_mfma_f32_16x16x32_bf16 v[{acc}:{acc+3}], v[{40+4*t}:{43+4*t}], a[{4*t}:{4*t+3}], {c}")
    A("v_add_f32 v16, v16, v20")
    A("v_cvt_pk_bf16_f32 v16, v16, v16")
    A("v_lshlrev_b32 v16, 16, v16")
    A(f"v_mul_f32 v17, {hexf(-LOG2E)}, v16")
    A("v_exp_f32 v17, v17")
    A("s_nop 0")
    A("v_add_f32 v17, 1.0, v17")
    A("v_rcp_f32 v17, v17")
    A("s_nop 0")
    A("v_cvt_pk_bf16_f32 v17, v17, v17")
    A("v_lshlrev_b32 v17, 16, v17")
    A("v_sub_f32 v18, 1.0, v17")
    A("v_cvt_pk_bf16_f32 v18, v18, v18")
    A("v_lshlrev_b32 v18, 16, v18")
    A("v_lshlrev_b32 v19, 2, v0")
    A("s_mov_b64 exec, 0xf")
    A(f"ds_write_b32 v19, v17 offset:{L_G}")
    A(f"ds_write_b32 v19, v18 offset:{L_OMG}")
    A("s_mov_b64 exec, -1")
    stamp("ffn")
    def q_check():
        A(f"v_xor_b32 v16, s{sTAG}, v29")
        A(f"v_xor_b32 v17, s{sTAG}, v31")
        A(f"v_xor_b32 v18, s{sTAG}, v33")
        A(f"v_xor_b32 v19, s{sTAG}, v35")
        A("v_or3_b32 v16, v16, v17, v18")
        A("v_or_b32 v16, v16, v19")
        return 16
    poll_loop(q_issue, q_check, first_wait=lambda: wait_vm(0, 1), pre_issued=True)
    A("v_mov_b32 v29, v30")
    A("v_mov_b32 v30, v32")
    A("v_mov_b32 v31, v34")
    A("v_lshlrev_b32 v16, 4, v0")
    A(f"ds_write_b128 v16, v[28:31] offset:{L_QF}")
    A("v_mov_b32 v17, 1")
    A("s_waitcnt lgkmcnt(0)")
    A("ds_write_b32 v1, v17")
    stamp("qpolled")
    A("v_lshrrev_b32 v24, 5, v0")
    A(f"v_mul_u32_u24 v24, 28672, v24")
    A("v_lshrrev_b32 v25, 3, v0")
    A("v_and_b32 v25, 3, v25")
    A(f"v_mul_u32_u24 v26, 7168, v25")
    A("v_add_u32 v24, v24, v26")
    A("v_and_b32 v26, 7, v0")
    A("v_lshlrev_b32 v27, 3, v26")
    A("v_add_u32 v24, v24, v27")
    A(f"s_mul_i32 s{sT0}, s{sKG}, 56")
    A(f"s_add_u32 s{sT3}, s{sT0}, 0x{WS_F:x}")
    A("v_mov_b32 v28, 0")
    A("s_mov_b32 exec_lo, 0x7f7f7f7f")
    A("s_mov_b32 exec_hi, 0x7f7f7f7f")
    def h_issue():
        A(f"buffer_load_dwordx2 v[28:29], v24, s[{SRD_WS}:{SRD_WS+3}], s{sT3} offen sc1")
    def h_check():
        A(f"v_xor_b32 v16, s{sTAG}, v29")
        return 16
    poll_loop(h_issue, h_check)
    A("v_mov_b32 v30, v28")
    A("v_permlane32_swap_b32 v28, v30")
    A(f"s_mov_b32 s{sT0}, 0xffff0000")
    A("v_lshlrev_b32 v16, 16, v28")
    A(f"v_and_b32 v17, s{sT0}, v28")
    A(f"v_mul_f32 v18, {hexf(-LOG2E)}, v16")
    A(f"v_mul_f32 v19, {hexf(-LOG2E)}, v17")
    A("v_exp_f32 v18, v18")
    A("v_exp_f32 v19, v19")
    A("s_nop 0")
    A("v_add_f32 v18, 1.0, v18")
    A("v_add_f32 v19, 1.0, v19")
    A("v_rcp_f32 v18, v18")
    A("v_rcp_f32 v19, v19")
    A("s_nop 0")
    A("v_mul_f32 v16, v16, v18")
    A("v_mul_f32 v17, v17, v19")
    A("v_cvt_pk_bf16_f32 v16, v16, v17")
    A(f"v_and_b32 v17, s{sT0}, v16")
    A("v_lshlrev_b32 v16, 16, v16")
    A("v_lshlrev_b32 v18, 16, v30")
    A(f"v_and_b32 v19, s{sT0}, v30")
    A("v_mul_f32 v16, v16, v18")
    A("v_mul_f32 v17, v17, v19")
    A("v_cvt_pk_bf16_f32 v16, v16, v17")
    A("v_lshlrev_b32 v25, 5, v25")
    A("v_lshlrev_b32 v26, 2, v26")
    A("v_add_u32 v25, v25, v26")
    A("s_mov_b32 exec_hi, 0")
    A(f"ds_write_b32 v25, v16 offset:{L_HB}")
    A("s_mov_b64 exec, -1")
    stamp("hdone")
    A("v_lshrrev_b32 v16, 5, v0")
    A("v_and_b32 v17, 31, v0")
    for q in range(4):
        A(f"v_add_u32 v18, {2*q}, v16")
        A("v_lshlrev_b32 v18, 1, v18")
        A("v_xor_b32 v18, v18, v17")
        A("v_lshlrev_b32 v18, 4, v18")
        A("v_lshlrev_b32 v19, 10, v16")
        A(f"v_add_u32 v{20+q}, v18, v19")
    srd(SRD_A, S_WO, 4096 * 512 * 2)
    srd(SRD_B, S_WD, 1792 * 512 * 2)
    A(f"s_lshl_b32 s{sT0}, s{sHKV}, 2")
    A(f"s_add_u32 s{sT0}, s{sT0}, s{sHC}")
    A(f"s_lshl_b32 s{sT0}, s{sT0}, 7")
    A(f"s_lshl_b32 s{sT1}, s{sJP}, 1")
    A(f"s_add_u32 s{sT0}, s{sT0}, s{sT1}")
    A(f"s_lshl_b32 s{sT0}, s{sT0}, 10")
    A(f"s_lshl_b32 s{sT1}, s{sCG}, 9")
    A(f"s_add_u32 s{sOFF}, s{sT0}, s{sT1}")
    A(f"s_mul_i32 s{sT2}, s{sKG}, {14*1024}")
    A(f"s_add_u32 s{sT2}, s{sT2}, s{sT1}")
    if cfg.wtrig == "cnt":
        Lc = newlab("cspin"); Lcd = newlab("cdone")
        A(f"s_mov_b32 s{sCNT}, {cfg.spin_l}")
        A.label(Lc)
        A("ds_read_b32 v16, v1 offset:8")
        A("s_waitcnt lgkmcnt(0)")
        A(f"v_readfirstlane_b32 s{sT0}, v16")
        A(f"s_cmp_ge_u32 s{sT0}, 8")
        A(f"s_cbranch_scc1 {Lcd}")
        A("s_sleep 2")
        A(f"s_sub_u32 s{sCNT}, s{sCNT}, 1")
        A(f"s_cmp_lg_u32 s{sCNT}, 0")
        A(f"s_cbranch_scc1 {Lc}")
        A.label(Lcd)
    for u in range(16):
        A(f"s_mov_b32 m0, 0x{L_WO + 1024*u:x}")
        A(f"buffer_load_dwordx4 v{20+(u&3)}, s[{SRD_A}:{SRD_A+3}], s{sOFF} offen {cfg.wnt} lds")
        if u < 15: A(f"s_add_u32 s{sOFF}, s{sOFF}, 0x2000")
    for u in range(8):
        A(f"s_mov_b32 m0, 0x{L_WD + 1024*u:x}")
        A(f"buffer_load_dwordx4 v{20+(u&3)}, s[{SRD_B}:{SRD_B+3}], s{sT2} offen {cfg.wnt} lds")
        if u < 6: A(f"s_add_u32 s{sT2}, s{sT2}, 0x800")
    stamp("wissued")
    A("v_lshrrev_b32 v24, 2, v0")
    A("v_lshlrev_b32 v24, 14, v24")
    A("v_and_b32 v25, 3, v0")
    A("v_lshlrev_b32 v25, 4, v25")
    A("v_add_u32 v24, v24, v25")
    A(f"s_lshl_b32 s{sT0}, s{sJ}, 6")
    A(f"s_add_u32 s{sT0}, s{sT0}, 0x{WS_YB:x}")
    YO = 56
    for u in range(8):
        A(f"s_add_u32 s{YO+u}, s{sT0}, 0x{u*0x40000:x}")
    A("s_waitcnt lgkmcnt(0)")
    A("s_barrier")
    A("s_waitcnt vmcnt(0)")
    stamp("wland")
    srd(SRD_B, S_OUT, 4096)
    A("s_barrier")
    def y_issue():
        for u in range(8):
            A(f"buffer_load_dwordx4 v[{40+4*u}:{43+4*u}], v24, s[{SRD_WS}:{SRD_WS+3}], s{YO+u} offen sc1")
    def y_check():
        for u in range(8):
            A(f"v_xor_b32 v{8+2*u}, s{sTAG}, v{41+4*u}")
            A(f"v_xor_b32 v{9+2*u}, s{sTAG}, v{43+4*u}")
        A("v_or3_b32 v8, v8, v9, v10")
        A("v_or3_b32 v11, v11, v12, v13")
        A("v_or3_b32 v14, v14, v15, v16")
        A("v_or3_b32 v17, v17, v18, v19")
        A("v_or3_b32 v20, v20, v21, v22")
        A("v_or3_b32 v8, v8, v11, v14")
        A("v_or3_b32 v17, v17, v20, v23")
        A("v_or_b32 v8, v8, v17")
        return 8
    poll_loop(y_issue, y_check)
    stamp("gathB")
    A("v_add_f32 v8, v40, v44")
    A("v_add_f32 v10, v42, v46")
    A("v_add_f32 v9, v48, v52")
    A("v_add_f32 v11, v50, v54")
    A("v_add_f32 v12, v56, v60")
    A("v_add_f32 v13, v58, v62")
    A("v_add_f32 v14, v64, v68")
    A("v_add_f32 v15, v66, v70")
    A("v_add_f32 v8, v8, v9")
    A("v_add_f32 v10, v10, v11")
    A("v_add_f32 v12, v12, v14")
    A("v_add_f32 v13, v13, v15")
    A("v_add_f32 v8, v8, v12")
    A("v_add_f32 v10, v10, v13")
    xlane_reduce("v_add_f32", [8, 10], [9, 11], ["r4", "r8", "x16", "x32"])
    A(f"v_mov_b32_dpp v12, v8 quad_perm:[2,3,0,1] {DPPM}")
    A(f"v_mov_b32_dpp v13, v10 quad_perm:[2,3,0,1] {DPPM}")
    A("v_cvt_pk_bf16_f32 v8, v8, v12")
    A("v_cvt_pk_bf16_f32 v10, v10, v13")
    A("v_lshlrev_b32 v14, 11, v0")
    A(f"s_lshl_b32 s{sT0}, s{sJ}, 2")
    A("s_mov_b64 exec, 3")
    A(f"buffer_store_dword v8, v14, s[{SRD_B}:{SRD_B+3}], s{sT0} offen")
    A(f"buffer_store_dword v10, v14, s[{SRD_B}:{SRD_B+3}], s{sT0} offen offset:1024")
    Lne = newlab("noe")
    A(f"s_cmp_lg_u32 s{sJ}, 0")
    A(f"s_cbranch_scc1 {Lne}")
    A("s_mov_b64 exec, 1")
    A(f"v_mov_b32 v15, s{sTAG}")
    A("v_mov_b32 v16, 0")
    A(f"buffer_store_dword v15, v16, s[{SRD_WS}:{SRD_WS+3}], 0 offen sc1")
    A.label(Lne)
    A("s_mov_b64 exec, -1")
    stamp("end")
    write_stamps()
    A.label("L_end")
    A("s_endpgm")
    R('.section .rodata,"a"')
    R(".p2align 6")
    R(f".amdhsa_kernel {NAME}")
    R("  .amdhsa_next_free_vgpr 168")
    R("  .amdhsa_next_free_sgpr 102")
    R("  .amdhsa_accum_offset 104")
    R("  .amdhsa_group_segment_fixed_size 0")
    R("  .amdhsa_kernarg_size 104")
    R("  .amdhsa_user_sgpr_count 2")
    R("  .amdhsa_user_sgpr_kernarg_segment_ptr 1")
    R("  .amdhsa_system_sgpr_workgroup_id_x 1")
    R(".end_amdhsa_kernel")
    return A.text(), stamp_names, A.nops

if __name__ == "__main__":
    out = sys.argv[1]
    kw = {}
    for a in sys.argv[2:]:
        k, v = a.split("=")
        if v in ("True", "False"): v = (v == "True")
        elif v.lstrip("-").isdigit(): v = int(v)
        kw[k] = v
    txt, names, nops = gen(Cfg(**kw))
    open(out, "w").write(txt)
    print("wrote", out, "lines", txt.count("\n"), "nops", nops, names if kw.get("stamps") else "")
```

```python
import sys, os, math, struct
sys.path.insert(0, os.path.dirname(os.path.abspath(__file__)))
from asmlib import Asm

NAME = "gated_mix__gqa_block_cached__swiglu_ffn__decode_kernel"

WS_E = 0x0
WS_Q = 0x10000
WS_F = 0x20000
WS_ST = 0x30000
WS_OA = 0x100000
WS_YB = 0x200000
WS_STAMP = 0x400000
WS_DUMP = 0x500000
WS_BYTES = 0x400000

L_XS = 0x0
XP = 1056
L_GW = 0x1100
L_QF = 0x1500
L_FLAG = 0x1900
L_G = 0x1910
L_OMG = 0x1920
L_STL = 0x1A00
L_OB = 0x1B00
L_HB = 0x1C00
L_T0 = 0x2000
L_T1 = 0x6000
L_WO = 0xA000
L_WD = 0xE000
L_PART = L_T0
LDS_BYTES = 0x10000

TAGC = 0x9E3779B9
LOG2E = 1.4426950408889634
SCALE = 128 ** -0.5

def f2u(x):
    return struct.unpack("<I", struct.pack("<f", x))[0]

def hexf(x):
    return "0x%08x" % f2u(x)

class Cfg:
    stamps = False
    dump = False
    emu = False
    kprio = 0
    vprio = 0
    hprio = 3
    wtrig = "cnt"
    nt = "nt"
    wnt = "nt"
    spin_g = 20000
    spin_l = 400000
    sleep_poll = 1
    b0late = True
    rx = 0
    rxq = 0
    rxf = 0
    nohop = False
    def __init__(self, **kw):
        for k, v in kw.items():
            assert hasattr(self, k), k
            setattr(self, k, v)

DPPM = "row_mask:0xf bank_mask:0xf"

def gen(cfg):
    A = Asm()
    R = A.raw
    ws_bytes = 0x800000 if (cfg.stamps or cfg.dump) else WS_BYTES
    S_X, S_K, S_V, S_WQ, S_WO, S_BX, S_WG, S_WU = 16, 18, 20, 22, 24, 26, 28, 30
    S_WD, S_GW, S_OUT, S_DBG, S_WS = 32, 34, 36, 38, 40
    sJ, sHKV, sR, sB, sS, sW = 2, 3, 4, 5, 6, 7
    sTAG = 8
    sT0, sT1, sT2, sT3 = 9, 10, 11, 12
    sCNT = 13
    sOFF = 14
    sC = 15
    SRD_A, SRD_B, SRD_WS, SRD_C, SRD_D = 44, 48, 52, 56, 60
    sKG, sHC, sJP, sCG = 64, 65, 66, 67
    sM0, sM1 = 68, 69
    sRA = 42
    sRQ = 43
    sRF = 70 if not cfg.stamps else 71
    sST = 72
    nstamp = [0]
    stamp_names = {"H": [], "S": []}

    def srd(d, base, nbytes):
        A(f"s_mov_b32 s{d}, s{base}")
        A(f"s_mov_b32 s{d+1}, s{base+1}")
        A(f"s_mov_b32 s{d+2}, 0x{nbytes:x}")
        A(f"s_mov_b32 s{d+3}, 0x00020000")

    role = ["S"]
    def stamp(name):
        if not cfg.stamps: return
        k = len(stamp_names[role[0]])
        assert k < 12
        stamp_names[role[0]].append(name)
        A(f"s_memrealtime s[{sST+2*k}:{sST+2*k+1}]")
        A("s_waitcnt lgkmcnt(0)")

    def write_stamps():
        if not cfg.stamps: return
        n = len(stamp_names[role[0]])
        A(f"s_mul_i32 s{sT0}, s{sJ}, 9")
        A(f"s_add_u32 s{sT0}, s{sT0}, s70")
        A(f"s_lshl_b32 s{sT0}, s{sT0}, 6")
        A(f"s_add_u32 s{sT0}, s{sT0}, 0x{WS_STAMP:x}")
        A("s_mov_b64 exec, 1")
        A(f"v_mov_b32 v1, s{sT0}")
        for k in range(n):
            A(f"v_mov_b32 v2, s{sST+2*k}")
            A(f"buffer_store_dword v2, v1, s[{SRD_WS}:{SRD_WS+3}], 0 offen offset:{4*k}")
        A(f"s_getreg_b32 s{sT0}, hwreg(HW_REG_XCC_ID)")
        A(f"v_mov_b32 v2, s{sT0}")
        A(f"buffer_store_dword v2, v1, s[{SRD_WS}:{SRD_WS+3}], 0 offen offset:56")
        A(f"s_getreg_b32 s{sT0}, hwreg(HW_REG_HW_ID)")
        A(f"v_mov_b32 v2, s{sT0}")
        A(f"buffer_store_dword v2, v1, s[{SRD_WS}:{SRD_WS+3}], 0 offen offset:60")
        A("s_waitcnt vmcnt(0)")
        A("s_mov_b64 exec, -1")

    lab = [0]
    def newlab(p):
        lab[0] += 1
        return f"L_{p}_{lab[0]}"

    def poll_loop(issue, check, first_wait=None, pre_issued=False):
        L = newlab("poll"); D = newlab("done")
        A(f"s_mov_b32 s{sCNT}, {1 if cfg.nohop else cfg.spin_g}")
        if pre_issued:
            F = newlab("first")
            first_wait()
            A(f"s_branch {F}")
        A.label(L)
        A.flush_hazards(2)
        issue()
        A("s_waitcnt vmcnt(0)")
        if pre_issued:
            A.label(F)
        vt = check()
        A(f"v_cmp_ne_u32 vcc, 0, v{vt}")
        A("s_nop 1")
        A("s_and_b64 exec, exec, vcc")
        A(f"s_cbranch_execz {D}")
        if cfg.sleep_poll: A(f"s_sleep {cfg.sleep_poll}")
        A(f"s_sub_u32 s{sCNT}, s{sCNT}, 1")
        A(f"s_cmp_lg_u32 s{sCNT}, 0")
        A(f"s_cbranch_scc1 {L}")
        A.label(D)
        A("s_mov_b64 exec, -1")

    def xlane_reduce(op, regs, tmps, steps):
        for st in steps:
            if st[0] == 'r':
                n = int(st[1:])
                for r in regs:
                    A(f"{op}_dpp v{r}, v{r}, v{r} row_ror:{n} {DPPM}")
            else:
                ins = "v_permlane16_swap_b32" if st == 'x16' else "v_permlane32_swap_b32"
                for r, t in zip(regs, tmps):
                    A(f"v_mov_b32 v{t}, v{r}")
                for r, t in zip(regs, tmps):
                    A(f"{ins} v{r}, v{t}")
                for r, t in zip(regs, tmps):
                    A(f"{op} v{r}, v{r}, v{t}")

    hdr = open("gated_mix__gqa_block_cached__swiglu_ffn__decode.s.ref").read().split("\n")
    for l in hdr:
        if l.startswith("; @launch"): break
        if l.startswith(";"): R(l)
    R(f"; @launch grid=(256,1,1) block=(576,1,1) lds={LDS_BYTES}")
    R('.amdgcn_target "amdgcn-amd-amdhsa--gfx950"')
    R(".text"); R(f".globl {NAME}"); R(".p2align 8"); R(f".type {NAME},@function"); R(f"{NAME}:")

    A("s_cmp_ge_u32 s2, 256")
    A("s_cbranch_scc1 L_end")
    if cfg.stamps:
        A(f"s_memrealtime s[{sST}:{sST+1}]")
        stamp_names["H"].append("start"); stamp_names["S"].append("start")
    A("s_load_dwordx16 s[16:31], s[0:1], 0")
    A("s_load_dwordx8 s[32:39], s[0:1], 64")
    A("s_load_dwordx2 s[40:41], s[0:1], 96")
    A("v_lshrrev_b32 v1, 6, v0")
    A("v_and_b32 v0, 63, v0")
    A(f"s_and_b32 s{sHKV}, s2, 7")
    A(f"v_readfirstlane_b32 s{sW}, v1")
    A(f"s_lshr_b32 s{sR}, s2, 3")
    A(f"s_xor_b32 s{sRA}, s{sR}, {cfg.rx}")
    A(f"s_xor_b32 s{sRQ}, s{sR}, {cfg.rxq}")
    A(f"s_xor_b32 s{sRF}, s{sR}, {cfg.rxf}")
    A(f"s_lshr_b32 s{sB}, s{sRA}, 3")
    A(f"s_and_b32 s{sS}, s{sRA}, 7")
    A(f"s_lshr_b32 s{sKG}, s{sR}, 1")
    A(f"s_lshr_b32 s{sHC}, s{sKG}, 2")
    A(f"s_and_b32 s{sJP}, s{sKG}, 3")
    A(f"s_and_b32 s{sCG}, s{sR}, 1")
    A(f"s_lshl_b32 s{sT0}, s{sHKV}, 4")
    A(f"s_add_u32 s{sKG}, s{sKG}, s{sT0}")
    if cfg.stamps: A(f"s_mov_b32 s70, s{sW}")
    A(f"s_cmp_eq_u32 s{sW}, 0")
    A("s_cbranch_scc1 L_helper")

    role[0] = "S"
    if not cfg.b0late: A("s_barrier")
    A(f"s_sub_u32 s{sW}, s{sW}, 1")
    vK, vV = 1, 2
    A("v_lshrrev_b32 v3, 2, v0")
    A("v_and_b32 v3, 3, v3")
    A("v_lshlrev_b32 v3, 8, v3")
    A("v_lshrrev_b32 v4, 4, v0")
    A("v_lshlrev_b32 v4, 6, v4")
    A("v_and_b32 v5, 3, v0")
    A("v_lshlrev_b32 v5, 4, v5")
    A(f"v_or_b32 v{vK}, v3, v4")
    A(f"v_or_b32 v{vK}, v{vK}, v5")
    A(f"v_lshlrev_b32 v{vV}, 4, v0")
    A(f"s_lshl_b32 s{sT0}, s{sB}, 3")
    A(f"s_add_u32 s{sT0}, s{sT0}, s{sHKV}")
    A(f"s_lshl_b32 s{sT0}, s{sT0}, 20")
    A(f"s_lshl_b32 s{sT1}, s{sW}, 17")
    A(f"s_add_u32 s{sT0}, s{sT0}, s{sT1}")
    A(f"s_lshl_b32 s{sT1}, s{sS}, 10")
    A(f"s_add_u32 s{sOFF}, s{sT0}, s{sT1}")
    A(f"s_mov_b32 s{sT2}, s{sOFF}")
    A("s_waitcnt lgkmcnt(0)")
    srd(SRD_A, S_K, 32 << 20)
    srd(SRD_B, S_V, 32 << 20)
    srd(SRD_WS, S_WS, ws_bytes)
    if cfg.b0late: A("s_barrier")
    stamp("args")
    if cfg.kprio: A(f"s_setprio {cfg.kprio}")
    for u in range(16):
        A(f"buffer_load_dwordx4 a[{4*u}:{4*u+3}], v{vK}, s[{SRD_A}:{SRD_A+3}], s{sOFF} offen {cfg.nt}")
        if u < 15: A(f"s_add_u32 s{sOFF}, s{sOFF}, 0x2000")
    if cfg.kprio != cfg.vprio: A(f"s_setprio {cfg.vprio}")
    VB = 40
    for u in range(16):
        A(f"buffer_load_dwordx4 v[{VB+4*u}:{VB+4*u+3}], v{vV}, s[{SRD_B}:{SRD_B+3}], s{sT2} offen {cfg.nt}")
        if u < 15: A(f"s_add_u32 s{sT2}, s{sT2}, 0x2000")
    if cfg.vprio: A("s_setprio 0")
    A(f"v_mov_b32 v1, 0x{L_FLAG:x}")
    A("v_mov_b32 v2, 1")
    A("s_mov_b64 exec, 1")
    A("ds_add_u32 v1, v2 offset:8")
    A("s_mov_b64 exec, -1")
    stamp("issued")
    QF = 4
    A(f"v_lshlrev_b32 v3, 4, v0")
    Lq = newlab("qspin"); Lqd = newlab("qdone")
    A(f"s_mov_b32 s{sCNT}, {cfg.spin_l}")
    A.label(Lq)
    A("ds_read_b64 v[8:9], v1")
    A(f"ds_read_b128 v[{QF}:{QF+3}], v3 offset:{L_QF}")
    A("s_waitcnt lgkmcnt(0)")
    A(f"v_readfirstlane_b32 s{sT0}, v8")
    A(f"v_readfirstlane_b32 s{sTAG}, v9")
    A(f"s_cmp_lg_u32 s{sT0}, 0")
    A(f"s_cbranch_scc1 {Lqd}")
    A("s_sleep 2")
    A(f"s_sub_u32 s{sCNT}, s{sCNT}, 1")
    A(f"s_cmp_lg_u32 s{sCNT}, 0")
    A(f"s_cbranch_scc1 {Lq}")
    A.label(Lqd)
    stamp("qready")
    DQ = [8, 12, 16, 20]
    SB = 24
    A("s_waitcnt vmcnt(16)")
    stamp("karr")
    def qk_mfma(u):
        d = DQ[u % 4]
        A(f"v_mfma_f32_16x16x32_bf16 v[{d}:{d+3}], a[{4*u}:{4*u+3}], v[{QF}:{QF+3}], 0")
    def qk_dpp(u, k):
        d = DQ[u % 4]
        if k == 0:
            A(f"v_mov_b32_dpp v{SB+u}, v{d} quad_perm:[0,0,0,0] {DPPM}")
        else:
            A(f"v_add_f32_dpp v{SB+u}, v{d+k}, v{SB+u} quad_perm:[{k},{k},{k},{k}] {DPPM}")
    qk_mfma(0); qk_mfma(1)
    for p in range(8):
        a, b_ = 2 * p, 2 * p + 1
        if p < 7: qk_mfma(a + 2)
        if p < 7: qk_mfma(b_ + 2)
        for k in range(4):
            qk_dpp(a, k); qk_dpp(b_, k)
    if cfg.dump:
        A(f"s_lshl_b32 s{sT0}, s{sJ}, 3"); A(f"s_add_u32 s{sT0}, s{sT0}, s{sW}"); A(f"s_lshl_b32 s{sT0}, s{sT0}, 12")
        A(f"s_add_u32 s{sT0}, s{sT0}, 0x{WS_DUMP:x}")
        A("v_lshlrev_b32 v3, 2, v0")
        for u in range(16):
            A(f"buffer_store_dword v{SB+u}, v3, s[{SRD_WS}:{SRD_WS+3}], s{sT0} offen offset:{256*u}")
    vM, vL, vT = 2, 3, 1
    if cfg.emu:
        A(f"s_mov_b32 s{sC}, {hexf(SCALE)}")
        A(f"s_mov_b32 s{sT0}, 0xffff0000")
        for p in range(8):
            a, b_ = SB + 2 * p, SB + 2 * p + 1
            A(f"v_cvt_pk_bf16_f32 v{a}, v{a}, v{b_}")
        for p in range(8):
            a, b_ = SB + 2 * p, SB + 2 * p + 1
            A(f"v_and_b32 v{b_}, s{sT0}, v{a}")
            A(f"v_lshlrev_b32 v{a}, 16, v{a}")
        for u in range(16):
            A(f"v_mul_f32 v{SB+u}, s{sC}, v{SB+u}")
        for p in range(8):
            a, b_ = SB + 2 * p, SB + 2 * p + 1
            A(f"v_cvt_pk_bf16_f32 v{a}, v{a}, v{b_}")
        for p in range(8):
            a, b_ = SB + 2 * p, SB + 2 * p + 1
            A(f"v_and_b32 v{b_}, s{sT0}, v{a}")
            A(f"v_lshlrev_b32 v{a}, 16, v{a}")
        A(f"s_mov_b32 s{sC}, {hexf(LOG2E)}")
    else:
        A(f"s_mov_b32 s{sC}, {hexf(SCALE*LOG2E)}")
    A(f"v_max3_f32 v{vM}, v{SB}, v{SB+1}, v{SB+2}")
    A(f"v_max3_f32 v{vT}, v{SB+3}, v{SB+4}, v{SB+5}")
    A(f"v_max3_f32 v{vM}, v{vM}, v{SB+6}, v{SB+7}")
    A(f"v_max3_f32 v{vT}, v{vT}, v{SB+8}, v{SB+9}")
    A(f"v_max3_f32 v{vM}, v{vM}, v{SB+10}, v{SB+11}")
    A(f"v_max3_f32 v{vT}, v{vT}, v{SB+12}, v{SB+13}")
    A(f"v_max3_f32 v{vM}, v{vM}, v{SB+14}, v{SB+15}")
    A(f"v_max_f32 v{vM}, v{vM}, v{vT}")
    xlane_reduce("v_max_f32", [vM], [vT], ["x16", "x32"])
    A(f"v_mul_f32 v{vM}, s{sC}, v{vM}")
    for u in range(16):
        A(f"v_fma_f32 v{SB+u}, v{SB+u}, s{sC}, -v{vM}")
    for u in range(16):
        A(f"v_exp_f32 v{SB+u}, v{SB+u}")
    A(f"v_add_f32 v{vL}, v{SB}, v{SB+1}")
    A(f"v_add_f32 v{vT}, v{SB+2}, v{SB+3}")
    for u in range(4, 16, 2):
        A(f"v_add_f32 v{vL}, v{vL}, v{SB+u}")
        A(f"v_add_f32 v{vT}, v{vT}, v{SB+u+1}")
    A(f"v_add_f32 v{vL}, v{vL}, v{vT}")
    for k in range(8):
        A(f"v_cvt_pk_bf16_f32 v{SB+k}, v{SB+2*k}, v{SB+2*k+1}")
    xlane_reduce("v_add_f32", [vL], [vT], ["x16", "x32"])
    A(f"v_lshlrev_b32 v{vT}, 4, v0")
    A(f"s_lshl_b32 s{sT0}, s{sW}, 3")
    A(f"s_add_u32 s{sT0}, s{sT0}, 0x{L_STL:x}")
    A(f"v_add_u32 v{vT}, s{sT0}, v{vT}")
    A("s_mov_b64 exec, 0x1111")
    A(f"ds_write_b64 v{vT}, v[{vM}:{vL}]")
    A("s_mov_b64 exec, -1")
    stamp("smax")
    PF = [SB, SB + 4]
    TQ = [8, 12, 16, 20]
    A(f"s_mov_b32 s{sT0}, 0x05040100")
    A(f"s_mov_b32 s{sT1}, 0x07060302")
    for blk in range(2):
        A(f"s_waitcnt vmcnt({8 if blk == 0 else 0})" if not cfg.dump else "s_waitcnt vmcnt(0)")
        if blk == 1: stamp("varr")
        def perms(f):
            dw, hf = f >> 1, f & 1
            t = TQ[f % 4]
            sel = sT1 if hf else sT0
            for q in range(4):
                lo = VB + 4 * (8 * blk + 2 * q) + dw
                hi = VB + 4 * (8 * blk + 2 * q + 1) + dw
                A(f"v_perm_b32 v{t+q}, v{hi}, v{lo}, s{sel}")
        def pv_mfma(f):
            t = TQ[f % 4]
            c = "0" if blk == 0 else f"a[{4*f}:{4*f+3}]"
            A(f"v_mfma_f32_16x16x32_bf16 a[{4*f}:{4*f+3}], v[{PF[blk]}:{PF[blk]+3}], v[{t}:{t+3}], {c}")
        perms(0)
        for f in range(8):
            if f < 7: perms(f + 1)
            pv_mfma(f)
    A(f"v_lshlrev_b32 v{vT}, 2, v0")
    A(f"s_lshl_b32 s{sT0}, s{sW}, 11")
    A(f"s_add_u32 s{sT0}, s{sT0}, 0x{L_PART:x}")
    A(f"v_add_u32 v{vT}, s{sT0}, v{vT}")
    for f in range(0, 8, 2):
        A(f"ds_write2st64_b32 v{vT}, a{4*f}, a{4*(f+1)} offset0:{f} offset1:{f+1}")
    A("s_waitcnt lgkmcnt(0)")
    stamp("pvdone")
    A("s_barrier")
    vGA, vGS = 4, 5
    Lnc = newlab("nocomb")
    A(f"s_cmp_ge_u32 s{sW}, 4")
    A(f"s_cbranch_scc1 {Lnc}")
    PB = 40
    A("v_lshrrev_b32 v8, 4, v0")
    A("v_lshlrev_b32 v8, 6, v8")
    A("v_and_b32 v9, 7, v0")
    A("v_lshlrev_b32 v9, 3, v9")
    A("v_add_u32 v8, v8, v9")
    A(f"ds_read_b64 v[10:11], v8 offset:{L_STL}")
    A("v_lshlrev_b32 v9, 2, v0")
    A(f"s_lshl_b32 s{sT0}, s{sW}, 9")
    A(f"s_add_u32 s{sT0}, s{sT0}, 0x{L_PART:x}")
    A(f"v_add_u32 v9, s{sT0}, v9")
    for w in range(8):
        A(f"ds_read2st64_b32 v[{PB+2*w}:{PB+2*w+1}], v9 offset0:{8*w} offset1:{8*w+1}")
    A(f"s_lshl_b32 s{sT0}, s{sHKV}, 5")
    A(f"s_add_u32 s{sT0}, s{sT0}, s{sRA}")
    A(f"s_lshl_b32 s{sT1}, s{sT0}, 12")
    A(f"s_lshl_b32 s{sT2}, s{sW}, 10")
    A(f"s_add_u32 s{sT1}, s{sT1}, s{sT2}")
    A(f"s_add_u32 s{sT1}, s{sT1}, 0x{WS_OA:x}")
    A("v_lshlrev_b32 v12, 4, v0")
    A("s_waitcnt lgkmcnt(8)")
    A("v_mov_b32 v13, v10")
    xlane_reduce("v_max_f32", [13], [None], ["r1", "r2", "r4"])
    A("v_sub_f32 v14, v10, v13")
    A("v_exp_f32 v14, v14")
    A("v_mul_f32 v15, v11, v14")
    xlane_reduce("v_add_f32", [15], [None], ["r1", "r2", "r4"])
    A("s_waitcnt lgkmcnt(0)")
    A(f"v_mul_f32_dpp v16, v14, v{PB} row_newbcast:0 {DPPM}")
    A(f"v_mul_f32_dpp v18, v14, v{PB+1} row_newbcast:0 {DPPM}")
    A(f"v_mul_f32_dpp v20, v14, v{PB+2} row_newbcast:1 {DPPM}")
    A(f"v_mul_f32_dpp v21, v14, v{PB+3} row_newbcast:1 {DPPM}")
    for w in range(2, 8):
        d0, d1 = (16, 18) if w % 2 == 0 else (20, 21)
        A(f"v_fmac_f32_dpp v{d0}, v14, v{PB+2*w} row_newbcast:{w} {DPPM}")
        A(f"v_fmac_f32_dpp v{d1}, v14, v{PB+2*w+1} row_newbcast:{w} {DPPM}")
    A(f"v_mov_b32 v17, s{sTAG}")
    A(f"v_mov_b32 v19, s{sTAG}")
    A("v_add_f32 v16, v16, v20")
    A("v_add_f32 v18, v18, v21")
    A(f"buffer_store_dwordx4 v[16:19], v12, s[{SRD_WS}:{SRD_WS+3}], s{sT1} offen sc1")
    Lns = newlab("nostat")
    A(f"s_cmp_lg_u32 s{sW}, 0")
    A(f"s_cbranch_scc1 {Lns}")
    A(f"s_lshl_b32 s{sT0}, s{sT0}, 6")
    A(f"s_add_u32 s{sT0}, s{sT0}, 0x{WS_ST:x}")
    A("v_mov_b32 v20, v13")
    A(f"v_mov_b32 v21, s{sTAG}")
    A("v_mov_b32 v22, v15")
    A(f"v_mov_b32 v23, s{sTAG}")
    A("s_mov_b32 exec_lo, 0x00010001")
    A("s_mov_b32 exec_hi, 0x00010001")
    A(f"buffer_store_dwordx4 v[20:23], v0, s[{SRD_WS}:{SRD_WS+3}], s{sT0} offen sc1")
    A("s_mov_b64 exec, -1")
    A.label(Lns)
    A.label(Lnc)
    stamp("pubA")
    A(f"s_lshr_b32 s{sT0}, s{sW}, 1")
    A(f"s_lshl_b32 s{sT0}, s{sT0}, 3")
    A(f"s_lshl_b32 s{sT1}, s{sHKV}, 5")
    A(f"s_add_u32 s{sT0}, s{sT0}, s{sT1}")
    A("v_lshrrev_b32 v8, 3, v0")
    A(f"v_add_u32 v8, s{sT0}, v8")
    A(f"v_lshlrev_b32 v{vGS}, 6, v8")
    A(f"v_lshlrev_b32 v{vGA}, 12, v8")
    A("v_and_b32 v9, 7, v0")
    A("v_lshlrev_b32 v9, 4, v9")
    A(f"v_add_u32 v{vGA}, v{vGA}, v9")
    A(f"s_and_b32 s{sT0}, s{sW}, 1")
    A(f"s_lshl_b32 s{sT0}, s{sT0}, 7")
    A(f"s_lshl_b32 s{sT1}, s{sJP}, 10")
    A(f"s_add_u32 s{sT0}, s{sT0}, s{sT1}")
    A(f"s_lshl_b32 s{sT1}, s{sHC}, 8")
    A(f"s_add_u32 s{sT0}, s{sT0}, s{sT1}")
    A(f"s_add_u32 s{sT2}, s{sT0}, 0x{WS_OA:x}")
    A(f"s_lshl_b32 s{sT3}, s{sHC}, 4")
    A(f"s_add_u32 s{sT3}, s{sT3}, 0x{WS_ST:x}")
    def g_issue():
        A(f"buffer_load_dwordx4 v[8:11], v{vGA}, s[{SRD_WS}:{SRD_WS+3}], s{sT2} offen sc1")
        A(f"buffer_load_dwordx4 v[12:15], v{vGS}, s[{SRD_WS}:{SRD_WS+3}], s{sT3} offen sc1")
    def g_check():
        A(f"v_xor_b32 v16, s{sTAG}, v9")
        A(f"v_xor_b32 v17, s{sTAG}, v11")
        A(f"v_xor_b32 v18, s{sTAG}, v13")
        A(f"v_xor_b32 v19, s{sTAG}, v15")
        A("v_or3_b32 v16, v16, v17, v18")
        A("v_or_b32 v16, v16, v19")
        return 16
    poll_loop(g_issue, g_check)
    stamp("gathA")
    A("v_mov_b32 v16, v12")
    xlane_reduce("v_max_f32", [16], [17], ["r8", "x16", "x32"])
    A("v_sub_f32 v18, v12, v16")
    A("v_exp_f32 v18, v18")
    A("s_nop 0")
    A("v_mul_f32 v8, v8, v18")
    A("v_mul_f32 v10, v10, v18")
    A("v_mul_f32 v14, v14, v18")
    xlane_reduce("v_add_f32", [8, 10, 14], [20, 21, 22], ["r8", "x16", "x32"])
    A("v_rcp_f32 v14, v14")
    A("v_lshrrev_b32 v16, 1, v0")
    A("v_and_b32 v16, 3, v16")
    A("v_lshlrev_b32 v16, 4, v16")
    A("v_and_b32 v17, 1, v0")
    A("v_lshlrev_b32 v17, 2, v17")
    A("v_add_u32 v16, v16, v17")
    A(f"s_lshr_b32 s{sT0}, s{sW}, 1")
    A(f"s_lshl_b32 s{sT0}, s{sT0}, 6")
    A(f"s_and_b32 s{sT1}, s{sW}, 1")
    A(f"s_lshl_b32 s{sT1}, s{sT1}, 3")
    A(f"s_add_u32 s{sT0}, s{sT0}, s{sT1}")
    A(f"s_add_u32 s{sT0}, s{sT0}, 0x{L_OB:x}")
    A(f"v_add_u32 v16, s{sT0}, v16")
    A("v_mul_f32 v8, v8, v14")
    A("v_mul_f32 v10, v10, v14")
    A("v_cvt_pk_bf16_f32 v8, v8, v10")
    A("s_mov_b64 exec, 0xff")
    A("ds_write_b32 v16, v8")
    A("s_mov_b64 exec, -1")
    A("v_and_b32 v20, 3, v0")
    A("v_lshrrev_b32 v21, 4, v0")
    A("v_lshlrev_b32 v22, 6, v20")
    A("v_lshlrev_b32 v23, 4, v21")
    A(f"v_add_u32 v22, v22, v23")
    A("v_lshlrev_b32 v23, 5, v20")
    A("v_lshlrev_b32 v24, 3, v21")
    A("v_add_u32 v23, v23, v24")
    A("v_lshrrev_b32 v24, 2, v0")
    A("v_and_b32 v25, 7, v24")
    A("v_lshlrev_b32 v25, 1, v25")
    A("v_lshrrev_b32 v26, 1, v20")
    A(f"s_lshl_b32 s{sT0}, s{sW}, 2")
    A(f"v_add_u32 v26, s{sT0}, v26")
    A("v_xor_b32 v26, v26, v25")
    A("v_lshlrev_b32 v26, 4, v26")
    A("v_lshlrev_b32 v24, 9, v24")
    A("v_add_u32 v24, v24, v26")
    A("v_and_b32 v26, 1, v20")
    A("v_lshlrev_b32 v26, 3, v26")
    A("v_add_u32 v24, v24, v26")
    A("v_xor_b32 v25, 32, v24")
    A("v_lshrrev_b32 v26, 1, v21")
    A("v_lshlrev_b32 v26, 9, v26")
    A("v_and_b32 v27, 15, v0")
    A("v_lshlrev_b32 v27, 5, v27")
    A("v_add_u32 v26, v26, v27")
    A("v_and_b32 v27, 1, v21")
    A("v_lshlrev_b32 v27, 4, v27")
    A("v_add_u32 v26, v26, v27")
    A(f"s_lshl_b32 s{sT0}, s{sKG}, 14")
    A(f"s_lshl_b32 s{sT1}, s{sCG}, 13")
    A(f"s_add_u32 s{sT0}, s{sT0}, s{sT1}")
    A(f"s_lshl_b32 s{sT1}, s{sW}, 10")
    A(f"s_add_u32 s{sT0}, s{sT0}, s{sT1}")
    A(f"s_add_u32 s{sT0}, s{sT0}, 0x{WS_YB:x}")
    A("s_mov_b32 s68, 0xffff0000")
    A("s_mov_b32 s69, 0xffff0000")
    A("s_waitcnt lgkmcnt(0)")
    A("s_barrier")
    stamp("B2")
    A(f"ds_read_b128 v[8:11], v22 offset:{L_OB}")
    A(f"ds_read_b64_tr_b16 v[40:41], v24 offset:{L_WO}")
    A(f"ds_read_b64_tr_b16 v[42:43], v24 offset:{L_WO+8192}")
    A(f"ds_read_b64_tr_b16 v[44:45], v25 offset:{L_WO}")
    A(f"ds_read_b64_tr_b16 v[46:47], v25 offset:{L_WO+8192}")
    A(f"ds_read_b64 v[12:13], v23 offset:{L_HB}")
    A(f"ds_read_b64_tr_b16 v[48:49], v24 offset:{L_WD}")
    A(f"ds_read_b64_tr_b16 v[50:51], v25 offset:{L_WD}")
    A(f"v_mov_b32 v27, 0x{L_G:x}")
    A("ds_read_b128 v[28:31], v27")
    A("ds_read_b128 v[32:35], v27 offset:16")
    A("s_waitcnt lgkmcnt(5)")
    A("v_mfma_f32_16x16x32_bf16 v[52:55], v[8:11], v[40:43], 0")
    A("v_mfma_f32_16x16x32_bf16 v[56:59], v[8:11], v[44:47], 0")
    A("s_waitcnt lgkmcnt(2)")
    A("v_mfma_f32_16x16x16_bf16 v[60:63], v[12:13], v[48:49], 0")
    A("v_mfma_f32_16x16x16_bf16 v[64:67], v[12:13], v[50:51], 0")
    A("s_waitcnt lgkmcnt(0)")
    for r in range(4):
        A(f"v_mul_f32 v{52+r}, v{52+r}, v{28+r}")
    for r in range(4):
        A(f"v_mul_f32 v{56+r}, v{56+r}, v{28+r}")
    for r in range(4):
        A(f"v_fmac_f32 v{52+r}, v{60+r}, v{32+r}")
    for r in range(4):
        A(f"v_fmac_f32 v{56+r}, v{64+r}, v{32+r}")
    A("s_mov_b32 vcc_lo, 0")
    A("s_mov_b32 vcc_hi, -1")
    for r in range(4):
        A(f"v_cndmask_b32 v{52+r}, v{52+r}, v{56+r}, vcc")
    A("v_cndmask_b32 v8, v52, v54, s[68:69]")
    A("v_cndmask_b32 v10, v53, v55, s[68:69]")
    A(f"v_mov_b32 v9, s{sTAG}")
    A(f"v_mov_b32 v11, s{sTAG}")
    A(f"buffer_store_dwordx4 v[8:11], v26, s[{SRD_WS}:{SRD_WS+3}], s{sT0} offen sc1")
    stamp("pubB")
    write_stamps()
    A("s_endpgm")

    A.label("L_helper")
    role[0] = "H"
    A.hist = []
    A(f"s_setprio {cfg.hprio}")
    A(f"v_mov_b32 v1, 0x{L_FLAG:x}")
    A("v_mov_b32 v2, 0")
    A("v_mov_b32 v3, 0")
    A("ds_write_b64 v1, v[2:3]")
    A("ds_write_b32 v1, v2 offset:8")
    A("s_waitcnt lgkmcnt(0)")
    if not cfg.b0late: A("s_barrier")
    srd(SRD_WS, S_WS, ws_bytes)
    srd(SRD_A, S_X, 4096)
    srd(SRD_B, S_WQ, 512 * 4096 * 2)
    stamp("args")
    A("v_mov_b32 v3, 0")
    A(f"buffer_load_dword v2, v3, s[{SRD_WS}:{SRD_WS+3}], 0 offen sc1")
    A("v_lshlrev_b32 v4, 4, v0")
    for b in range(4):
        A(f"s_mov_b32 m0, 0x{L_XS + 32*b:x}")
        A(f"buffer_load_dwordx4 v4, s[{SRD_A}:{SRD_A+3}], 0 offen offset:{1024*b} lds")
    A("v_lshrrev_b32 v5, 1, v0")
    A("v_and_b32 v6, 1, v0")
    A("v_lshlrev_b32 v6, 4, v6")
    A("v_lshlrev_b32 v7, 13, v5")
    A("v_add_u32 v7, v7, v6")
    A(f"s_lshl_b32 s{sT0}, s{sHKV}, 10")
    A(f"s_lshl_b32 s{sT1}, s{sRQ}, 5")
    A(f"s_add_u32 s{sOFF}, s{sT0}, s{sT1}")
    for t in range(16):
        A(f"s_mov_b32 m0, 0x{L_T0 + 1024*t:x}")
        A(f"buffer_load_dwordx4 v7, s[{SRD_B}:{SRD_B+3}], s{sOFF} offen {cfg.wnt} lds")
        if t < 15: A(f"s_add_u32 s{sOFF}, s{sOFF}, 0x40000")
    srd(SRD_C, S_GW, 1024)
    A(f"s_mov_b32 m0, 0x{L_GW:x}")
    A(f"buffer_load_dwordx4 v4, s[{SRD_C}:{SRD_C+3}], 0 offen lds")
    Lnf = newlab("noffn"); Lf2 = newlab("ffn2")
    A(f"s_cmp_ge_u32 s{sRF}, 28")
    A(f"s_cbranch_scc1 {Lnf}")
    A(f"s_cmp_ge_u32 s{sHKV}, 4")
    A(f"s_cselect_b32 s{SRD_D}, s{S_WU}, s{S_WG}")
    A(f"s_cselect_b32 s{SRD_D+1}, s{S_WU+1}, s{S_WG+1}")
    A(f"s_mov_b32 s{SRD_D+2}, 0x{512*1792*2:x}")
    A(f"s_mov_b32 s{SRD_D+3}, 0x00020000")
    A(f"s_and_b32 s{sT0}, s{sHKV}, 3")
    A(f"s_mul_i32 s{sT0}, s{sT0}, 28")
    A(f"s_add_u32 s{sT0}, s{sT0}, s{sRF}")
    A(f"s_lshl_b32 s{sOFF}, s{sT0}, 5")
    A(f"s_mov_b32 s{sT1}, 3584")
    A(f"v_mul_lo_u32 v8, v5, s{sT1}")
    A("v_add_u32 v8, v8, v6")
    for t in range(16):
        A(f"s_mov_b32 m0, 0x{L_T1 + 1024*t:x}")
        A(f"buffer_load_dwordx4 v8, s[{SRD_D}:{SRD_D+3}], s{sOFF} offen {cfg.wnt} lds")
        if t < 15: A(f"s_add_u32 s{sOFF}, s{sOFF}, 0x{32*3584:x}")
    A.label(Lnf)
    if cfg.b0late: A("s_barrier")
    stamp("issued")
    hasF = f"s_cmp_lt_u32 s{sRF}, 28"
    def wait_vm(n_noffn, n_ffn):
        La = newlab("wa"); Lb = newlab("wb")
        A(hasF)
        A(f"s_cbranch_scc1 {La}")
        A(f"s_waitcnt vmcnt({n_noffn})")
        A(f"s_branch {Lb}")
        A.label(La)
        A(f"s_waitcnt vmcnt({n_ffn})")
        A.label(Lb)
    A("v_and_b32 v9, 3, v0")
    A(f"v_mul_u32_u24 v9, {XP}, v9")
    A("v_lshrrev_b32 v10, 4, v0")
    A("v_lshlrev_b32 v10, 3, v10")
    A("v_add_u32 v9, v9, v10")
    A("v_lshlrev_b32 v11, 3, v0")
    wait_vm(17, 33)
    A(f"v_readfirstlane_b32 s{sTAG}, v2")
    A(f"s_add_u32 s{sTAG}, s{sTAG}, 0x{TAGC:x}")
    for t in range(16):
        A(f"ds_read2_b64 a[{4*t}:{4*t+3}], v9 offset0:{8*t} offset1:{8*t+4}")
    A(f"v_mov_b32 v12, s{sTAG}")
    A(f"ds_write_b32 v1, v12 offset:4")

    def tile_mfma(lbase, acc0, acc1):
        def rd(t):
            A(f"ds_read_b64_tr_b16 v[{40+4*t}:{41+4*t}], v11 offset:{lbase + 1024*t}")
            A(f"ds_read_b64_tr_b16 v[{42+4*t}:{43+4*t}], v11 offset:{lbase + 1024*t + 512}")
        for t in range(6): rd(t)
        for t in range(16):
            rem = min(16, t + 6) - (t + 1)
            A(f"s_waitcnt lgkmcnt({2*rem})")
            acc = acc0 if t % 2 == 0 else acc1
            c = "0" if t < 2 else f"v[{acc}:{acc+3}]"
            A(f"v_mfma_f32_16x16x32_bf16 v[{acc}:{acc+3}], v[{40+4*t}:{43+4*t}], a[{4*t}:{4*t+3}], {c}")
            if t + 6 < 16: rd(t + 6)
        for r in range(4):
            A(f"v_add_f32 v{acc0+r}, v{acc0+r}, v{acc1+r}")

    def tile_publish(acc, vaddr, soff):
        A(f"v_cvt_pk_bf16_f32 v{acc}, v{acc}, v{acc+1}")
        A(f"v_cvt_pk_bf16_f32 v{acc+2}, v{acc+2}, v{acc+3}")
        A(f"v_mov_b32 v{acc+1}, s{sTAG}")
        A(f"v_mov_b32 v{acc+3}, s{sTAG}")
        A("s_mov_b32 exec_lo, 0x000f000f")
        A("s_mov_b32 exec_hi, 0x000f000f")
        A(f"buffer_store_dwordx4 v[{acc}:{acc+3}], v{vaddr}, s[{SRD_WS}:{SRD_WS+3}], s{soff} offen sc1")
        A("s_mov_b64 exec, -1")

    A("v_and_b32 v13, 3, v0")
    A("v_lshrrev_b32 v14, 4, v0")
    A("v_lshlrev_b32 v14, 4, v14")
    A("v_lshlrev_b32 v15, 11, v13")
    A("v_add_u32 v15, v15, v14")
    A(f"v_mul_u32_u24 v13, 7168, v13")
    A("v_add_u32 v13, v13, v14")
    A(f"s_lshl_b32 s{sT0}, s{sHKV}, 13")
    A(f"s_lshl_b32 s{sT1}, s{sRQ}, 6")
    A(f"s_add_u32 s{sT0}, s{sT0}, s{sT1}")
    A(f"s_add_u32 s{sT2}, s{sT0}, 0x{WS_Q:x}")
    A("s_waitcnt lgkmcnt(0)")
    wait_vm(1, 17)
    stamp("tile")
    tile_mfma(L_T0, 16, 20)
    tile_publish(16, 15, sT2)
    stamp("pubQ")
    A("v_lshrrev_b32 v24, 2, v0")
    A("v_and_b32 v24, 3, v24")
    A("v_lshlrev_b32 v24, 9, v24")
    A("v_lshrrev_b32 v25, 4, v0")
    A("v_lshlrev_b32 v25, 7, v25")
    A("v_add_u32 v24, v24, v25")
    A("v_and_b32 v25, 3, v0")
    A("v_lshlrev_b32 v25, 5, v25")
    A("v_add_u32 v24, v24, v25")
    A(f"s_lshl_b32 s{sT0}, s{sHKV}, 13")
    A(f"s_lshl_b32 s{sT1}, s{sB}, 11")
    A(f"s_add_u32 s{sT0}, s{sT0}, s{sT1}")
    A(f"s_add_u32 s{sT3}, s{sT0}, 0x{WS_Q:x}")
    def q_issue():
        A(f"buffer_load_dwordx4 v[28:31], v24, s[{SRD_WS}:{SRD_WS+3}], s{sT3} offen sc1")
        A(f"buffer_load_dwordx4 v[32:35], v24, s[{SRD_WS}:{SRD_WS+3}], s{sT3} offen offset:16 sc1")
    q_issue()
    Lnf2 = newlab("noffn2")
    A(f"s_cmp_ge_u32 s{sRF}, 28")
    A(f"s_cbranch_scc1 {Lnf2}")
    A("s_waitcnt vmcnt(3)")
    tile_mfma(L_T1, 16, 20)
    A(f"s_and_b32 s{sT0}, s{sHKV}, 3")
    A(f"s_mul_i32 s{sT0}, s{sT0}, 28")
    A(f"s_add_u32 s{sT0}, s{sT0}, s{sRF}")
    A(f"s_lshl_b32 s{sT0}, s{sT0}, 6")
    A(f"s_lshr_b32 s{sT1}, s{sHKV}, 2")
    A(f"s_mul_i32 s{sT1}, s{sT1}, 28672")
    A(f"s_add_u32 s{sT0}, s{sT0}, s{sT1}")
    A(f"s_add_u32 s{sT2}, s{sT0}, 0x{WS_F:x}")
    tile_publish(16, 13, sT2)
    A.label(Lnf2)
    A.hist = []
    A("s_nop 7")
    A("s_waitcnt vmcnt(3)")
    A("v_lshrrev_b32 v10, 4, v0")
    A("v_lshlrev_b32 v10, 3, v10")
    A(f"v_add_u32 v26, 0x{L_GW:x}, v10")
    for t in range(16):
        A(f"ds_read2_b64 v[{40+4*t}:{43+4*t}], v26 offset0:{8*t} offset1:{8*t+4}")
    A("s_waitcnt lgkmcnt(0)")
    for t in range(16):
        acc = 16 if t % 2 == 0 else 20
        c = "0" if t < 2 else f"v[{acc}:{acc+3}]"
        A(f"v_mfma_f32_16x16x32_bf16 v[{acc}:{acc+3}], v[{40+4*t}:{43+4*t}], a[{4*t}:{4*t+3}], {c}")
    A("v_add_f32 v16, v16, v20")
    A("v_cvt_pk_bf16_f32 v16, v16, v16")
    A("v_lshlrev_b32 v16, 16, v16")
    A(f"v_mul_f32 v17, {hexf(-LOG2E)}, v16")
    A("v_exp_f32 v17, v17")
    A("s_nop 0")
    A("v_add_f32 v17, 1.0, v17")
    A("v_rcp_f32 v17, v17")
    A("s_nop 0")
    A("v_cvt_pk_bf16_f32 v17, v17, v17")
    A("v_lshlrev_b32 v17, 16, v17")
    A("v_sub_f32 v18, 1.0, v17")
    A("v_cvt_pk_bf16_f32 v18, v18, v18")
    A("v_lshlrev_b32 v18, 16, v18")
    A("v_lshlrev_b32 v19, 2, v0")
    A("s_mov_b64 exec, 0xf")
    A(f"ds_write_b32 v19, v17 offset:{L_G}")
    A(f"ds_write_b32 v19, v18 offset:{L_OMG}")
    A("s_mov_b64 exec, -1")
    stamp("ffn")
    def q_check():
        A(f"v_xor_b32 v16, s{sTAG}, v29")
        A(f"v_xor_b32 v17, s{sTAG}, v31")
        A(f"v_xor_b32 v18, s{sTAG}, v33")
        A(f"v_xor_b32 v19, s{sTAG}, v35")
        A("v_or3_b32 v16, v16, v17, v18")
        A("v_or_b32 v16, v16, v19")
        return 16
    poll_loop(q_issue, q_check, first_wait=lambda: wait_vm(0, 1), pre_issued=True)
    A("v_mov_b32 v29, v30")
    A("v_mov_b32 v30, v32")
    A("v_mov_b32 v31, v34")
    A("v_lshlrev_b32 v16, 4, v0")
    A(f"ds_write_b128 v16, v[28:31] offset:{L_QF}")
    A("v_mov_b32 v17, 1")
    A("s_waitcnt lgkmcnt(0)")
    A("ds_write_b32 v1, v17")
    stamp("qpolled")
    A("v_lshrrev_b32 v24, 5, v0")
    A(f"v_mul_u32_u24 v24, 28672, v24")
    A("v_lshrrev_b32 v25, 3, v0")
    A("v_and_b32 v25, 3, v25")
    A(f"v_mul_u32_u24 v26, 7168, v25")
    A("v_add_u32 v24, v24, v26")
    A("v_and_b32 v26, 7, v0")
    A("v_lshlrev_b32 v27, 3, v26")
    A("v_add_u32 v24, v24, v27")
    A(f"s_mul_i32 s{sT0}, s{sKG}, 56")
    A(f"s_add_u32 s{sT3}, s{sT0}, 0x{WS_F:x}")
    A("v_mov_b32 v28, 0")
    A("s_mov_b32 exec_lo, 0x7f7f7f7f")
    A("s_mov_b32 exec_hi, 0x7f7f7f7f")
    def h_issue():
        A(f"buffer_load_dwordx2 v[28:29], v24, s[{SRD_WS}:{SRD_WS+3}], s{sT3} offen sc1")
    def h_check():
        A(f"v_xor_b32 v16, s{sTAG}, v29")
        return 16
    poll_loop(h_issue, h_check)
    A("v_mov_b32 v30, v28")
    A("v_permlane32_swap_b32 v28, v30")
    A(f"s_mov_b32 s{sT0}, 0xffff0000")
    A("v_lshlrev_b32 v16, 16, v28")
    A(f"v_and_b32 v17, s{sT0}, v28")
    A(f"v_mul_f32 v18, {hexf(-LOG2E)}, v16")
    A(f"v_mul_f32 v19, {hexf(-LOG2E)}, v17")
    A("v_exp_f32 v18, v18")
    A("v_exp_f32 v19, v19")
    A("s_nop 0")
    A("v_add_f32 v18, 1.0, v18")
    A("v_add_f32 v19, 1.0, v19")
    A("v_rcp_f32 v18, v18")
    A("v_rcp_f32 v19, v19")
    A("s_nop 0")
    A("v_mul_f32 v16, v16, v18")
    A("v_mul_f32 v17, v17, v19")
    A("v_cvt_pk_bf16_f32 v16, v16, v17")
    A(f"v_and_b32 v17, s{sT0}, v16")
    A("v_lshlrev_b32 v16, 16, v16")
    A("v_lshlrev_b32 v18, 16, v30")
    A(f"v_and_b32 v19, s{sT0}, v30")
    A("v_mul_f32 v16, v16, v18")
    A("v_mul_f32 v17, v17, v19")
    A("v_cvt_pk_bf16_f32 v16, v16, v17")
    A("v_lshlrev_b32 v25, 5, v25")
    A("v_lshlrev_b32 v26, 2, v26")
    A("v_add_u32 v25, v25, v26")
    A("s_mov_b32 exec_hi, 0")
    A(f"ds_write_b32 v25, v16 offset:{L_HB}")
    A("s_mov_b64 exec, -1")
    stamp("hdone")
    A("v_lshrrev_b32 v16, 5, v0")
    A("v_and_b32 v17, 31, v0")
    for q in range(4):
        A(f"v_add_u32 v18, {2*q}, v16")
        A("v_lshlrev_b32 v18, 1, v18")
        A("v_xor_b32 v18, v18, v17")
        A("v_lshlrev_b32 v18, 4, v18")
        A("v_lshlrev_b32 v19, 10, v16")
        A(f"v_add_u32 v{20+q}, v18, v19")
    srd(SRD_A, S_WO, 4096 * 512 * 2)
    srd(SRD_B, S_WD, 1792 * 512 * 2)
    A(f"s_lshl_b32 s{sT0}, s{sHKV}, 2")
    A(f"s_add_u32 s{sT0}, s{sT0}, s{sHC}")
    A(f"s_lshl_b32 s{sT0}, s{sT0}, 7")
    A(f"s_lshl_b32 s{sT1}, s{sJP}, 1")
    A(f"s_add_u32 s{sT0}, s{sT0}, s{sT1}")
    A(f"s_lshl_b32 s{sT0}, s{sT0}, 10")
    A(f"s_lshl_b32 s{sT1}, s{sCG}, 9")
    A(f"s_add_u32 s{sOFF}, s{sT0}, s{sT1}")
    A(f"s_mul_i32 s{sT2}, s{sKG}, {14*1024}")
    A(f"s_add_u32 s{sT2}, s{sT2}, s{sT1}")
    if cfg.wtrig == "cnt":
        Lc = newlab("cspin"); Lcd = newlab("cdone")
        A(f"s_mov_b32 s{sCNT}, {cfg.spin_l}")
        A.label(Lc)
        A("ds_read_b32 v16, v1 offset:8")
        A("s_waitcnt lgkmcnt(0)")
        A(f"v_readfirstlane_b32 s{sT0}, v16")
        A(f"s_cmp_ge_u32 s{sT0}, 8")
        A(f"s_cbranch_scc1 {Lcd}")
        A("s_sleep 2")
        A(f"s_sub_u32 s{sCNT}, s{sCNT}, 1")
        A(f"s_cmp_lg_u32 s{sCNT}, 0")
        A(f"s_cbranch_scc1 {Lc}")
        A.label(Lcd)
    for u in range(16):
        A(f"s_mov_b32 m0, 0x{L_WO + 1024*u:x}")
        A(f"buffer_load_dwordx4 v{20+(u&3)}, s[{SRD_A}:{SRD_A+3}], s{sOFF} offen {cfg.wnt} lds")
        if u < 15: A(f"s_add_u32 s{sOFF}, s{sOFF}, 0x2000")
    for u in range(8):
        A(f"s_mov_b32 m0, 0x{L_WD + 1024*u:x}")
        A(f"buffer_load_dwordx4 v{20+(u&3)}, s[{SRD_B}:{SRD_B+3}], s{sT2} offen {cfg.wnt} lds")
        if u < 6: A(f"s_add_u32 s{sT2}, s{sT2}, 0x800")
    stamp("wissued")
    A("v_lshrrev_b32 v24, 2, v0")
    A("v_lshlrev_b32 v24, 14, v24")
    A("v_and_b32 v25, 3, v0")
    A("v_lshlrev_b32 v25, 4, v25")
    A("v_add_u32 v24, v24, v25")
    A(f"s_lshl_b32 s{sT0}, s{sJ}, 6")
    A(f"s_add_u32 s{sT0}, s{sT0}, 0x{WS_YB:x}")
    YO = 56
    for u in range(8):
        A(f"s_add_u32 s{YO+u}, s{sT0}, 0x{u*0x40000:x}")
    A("s_waitcnt lgkmcnt(0)")
    A("s_barrier")
    A("s_waitcnt vmcnt(0)")
    stamp("wland")
    srd(SRD_B, S_OUT, 4096)
    A("s_barrier")
    def y_issue():
        for u in range(8):
            A(f"buffer_load_dwordx4 v[{40+4*u}:{43+4*u}], v24, s[{SRD_WS}:{SRD_WS+3}], s{YO+u} offen sc1")
    def y_check():
        for u in range(8):
            A(f"v_xor_b32 v{8+2*u}, s{sTAG}, v{41+4*u}")
            A(f"v_xor_b32 v{9+2*u}, s{sTAG}, v{43+4*u}")
        A("v_or3_b32 v8, v8, v9, v10")
        A("v_or3_b32 v11, v11, v12, v13")
        A("v_or3_b32 v14, v14, v15, v16")
        A("v_or3_b32 v17, v17, v18, v19")
        A("v_or3_b32 v20, v20, v21, v22")
        A("v_or3_b32 v8, v8, v11, v14")
        A("v_or3_b32 v17, v17, v20, v23")
        A("v_or_b32 v8, v8, v17")
        return 8
    poll_loop(y_issue, y_check)
    stamp("gathB")
    A("v_add_f32 v8, v40, v44")
    A("v_add_f32 v10, v42, v46")
    A("v_add_f32 v9, v48, v52")
    A("v_add_f32 v11, v50, v54")
    A("v_add_f32 v12, v56, v60")
    A("v_add_f32 v13, v58, v62")
    A("v_add_f32 v14, v64, v68")
    A("v_add_f32 v15, v66, v70")
    A("v_add_f32 v8, v8, v9")
    A("v_add_f32 v10, v10, v11")
    A("v_add_f32 v12, v12, v14")
    A("v_add_f32 v13, v13, v15")
    A("v_add_f32 v8, v8, v12")
    A("v_add_f32 v10, v10, v13")
    xlane_reduce("v_add_f32", [8, 10], [9, 11], ["r4", "r8", "x16", "x32"])
    A(f"v_mov_b32_dpp v12, v8 quad_perm:[2,3,0,1] {DPPM}")
    A(f"v_mov_b32_dpp v13, v10 quad_perm:[2,3,0,1] {DPPM}")
    A("v_cvt_pk_bf16_f32 v8, v8, v12")
    A("v_cvt_pk_bf16_f32 v10, v10, v13")
    A("v_lshlrev_b32 v14, 11, v0")
    A(f"s_lshl_b32 s{sT0}, s{sJ}, 2")
    A("s_mov_b64 exec, 3")
    A(f"buffer_store_dword v8, v14, s[{SRD_B}:{SRD_B+3}], s{sT0} offen")
    A(f"buffer_store_dword v10, v14, s[{SRD_B}:{SRD_B+3}], s{sT0} offen offset:1024")
    Lne = newlab("noe")
    A(f"s_cmp_lg_u32 s{sJ}, 0")
    A(f"s_cbranch_scc1 {Lne}")
    A("s_mov_b64 exec, 1")
    A(f"v_mov_b32 v15, s{sTAG}")
    A("v_mov_b32 v16, 0")
    A(f"buffer_store_dword v15, v16, s[{SRD_WS}:{SRD_WS+3}], 0 offen sc1")
    A.label(Lne)
    A("s_mov_b64 exec, -1")
    stamp("end")
    write_stamps()
    A.label("L_end")
    A("s_endpgm")
    R('.section .rodata,"a"')
    R(".p2align 6")
    R(f".amdhsa_kernel {NAME}")
    R("  .amdhsa_next_free_vgpr 168")
    R("  .amdhsa_next_free_sgpr 102")
    R("  .amdhsa_accum_offset 104")
    R("  .amdhsa_group_segment_fixed_size 0")
    R("  .amdhsa_kernarg_size 104")
    R("  .amdhsa_user_sgpr_count 2")
    R("  .amdhsa_user_sgpr_kernarg_segment_ptr 1")
    R("  .amdhsa_system_sgpr_workgroup_id_x 1")
    R(".end_amdhsa_kernel")
    return A.text(), stamp_names, A.nops

if __name__ == "__main__":
    out = sys.argv[1]
    kw = {}
    for a in sys.argv[2:]:
        k, v = a.split("=")
        if v in ("True", "False"): v = (v == "True")
        elif v.lstrip("-").isdigit(): v = int(v)
        kw[k] = v
    txt, names, nops = gen(Cfg(**kw))
    open(out, "w").write(txt)
    if kw.get("stamps"): open(out + ".names", "w").write(repr(names))
    print("wrote", out, "lines", txt.count("\n"), "nops", nops, names if kw.get("stamps") else "")
```

```python
import sys, os, math, struct
sys.path.insert(0, os.path.dirname(os.path.abspath(__file__)))
from asmlib import Asm

NAME = "gated_mix__gqa_block_cached__swiglu_ffn__decode_kernel"

WS_E = 0x0
WS_Q = 0x10000
WS_F = 0x50000
WS_ST = 0x90000
WS_OA = 0x100000
WS_YB = 0x200000
WS_STAMP = 0x400000
WS_DUMP = 0x500000
WS_BYTES = 0x400000

L_XS = 0x0
XP = 1056
L_GW = 0x1100
L_QF = 0x1500
L_FLAG = 0x1900
L_G = 0x1910
L_OMG = 0x1920
L_STL = 0x1A00
L_OB = 0x1B00
L_HB = 0x1C00
L_T0 = 0x2000
L_T1 = 0x6000
L_WO = 0xA000
L_WD = 0xE000
L_PART = L_T0
LDS_BYTES = 0x10000

TAGC = 0x9E3779B9
TMASK = 0x3ff
LOG2E = 1.4426950408889634
SCALE = 128 ** -0.5

def f2u(x):
    return struct.unpack("<I", struct.pack("<f", x))[0]

def hexf(x):
    return "0x%08x" % f2u(x)

class Cfg:
    stamps = False
    kprio = 0
    vprio = 0
    hprio = 3
    wtrig = 8
    ftrig = -1
    nt = "nt"
    wnt = "nt"
    spin_g = 20000
    spin_l = 400000
    sleep_poll = 1
    b0 = "q"
    nohop = False
    qsleep = 2
    wby = "waves"
    qlate = True
    def __init__(self, **kw):
        for k, v in kw.items():
            assert hasattr(self, k), k
            setattr(self, k, v)

DPPM = "row_mask:0xf bank_mask:0xf"

def gen(cfg):
    A = Asm()
    R = A.raw
    ws_bytes = 0x800000 if cfg.stamps else WS_BYTES
    S_X, S_K, S_V, S_WQ, S_WO, S_BX, S_WG, S_WU = 16, 18, 20, 22, 24, 26, 28, 30
    S_WD, S_GW, S_OUT, S_DBG, S_WS = 32, 34, 36, 38, 40
    sJ, sHKV, sR, sB, sS, sW = 2, 3, 4, 5, 6, 7
    sTAG = 8
    sT0, sT1, sT2, sT3 = 9, 10, 11, 12
    sCNT = 13
    sOFF = 14
    sC = 15
    sKGL = 42
    sFID = 43
    SRD_A, SRD_B, SRD_WS, SRD_C, SRD_D = 44, 48, 52, 56, 60
    sKG, sHC, sJP, sCG = 64, 65, 66, 67
    sM0 = 68
    sWV = 70
    sTG = [72, 73, 74, 75]
    sM1 = 76
    sST = 78
    stamp_names = {"H": [], "S": []}

    def srd(d, base, nbytes):
        A(f"s_mov_b32 s{d}, s{base}")
        A(f"s_mov_b32 s{d+1}, s{base+1}")
        A(f"s_mov_b32 s{d+2}, 0x{nbytes:x}")
        A(f"s_mov_b32 s{d+3}, 0x00020000")

    role = ["S"]
    def stamp(name):
        if not cfg.stamps: return
        k = len(stamp_names[role[0]])
        assert k < 12
        stamp_names[role[0]].append(name)
        A(f"s_memrealtime s[{sST+2*k}:{sST+2*k+1}]")
        A("s_waitcnt lgkmcnt(0)")

    def write_stamps():
        if not cfg.stamps: return
        n = len(stamp_names[role[0]])
        A(f"s_mul_i32 s{sT0}, s{sJ}, 9")
        A(f"s_add_u32 s{sT0}, s{sT0}, s{sWV}")
        A(f"s_lshl_b32 s{sT0}, s{sT0}, 6")
        A(f"s_add_u32 s{sT0}, s{sT0}, 0x{WS_STAMP:x}")
        A("s_mov_b64 exec, 1")
        A(f"v_mov_b32 v1, s{sT0}")
        for k in range(n):
            A(f"v_mov_b32 v2, s{sST+2*k}")
            A(f"buffer_store_dword v2, v1, s[{SRD_WS}:{SRD_WS+3}], 0 offen offset:{4*k}")
        A(f"s_getreg_b32 s{sT0}, hwreg(HW_REG_XCC_ID)")
        A(f"v_mov_b32 v2, s{sT0}")
        A(f"buffer_store_dword v2, v1, s[{SRD_WS}:{SRD_WS+3}], 0 offen offset:56")
        A(f"s_getreg_b32 s{sT0}, hwreg(HW_REG_HW_ID)")
        A(f"v_mov_b32 v2, s{sT0}")
        A(f"buffer_store_dword v2, v1, s[{SRD_WS}:{SRD_WS+3}], 0 offen offset:60")
        A("s_waitcnt vmcnt(0)")
        A("s_mov_b64 exec, -1")

    lab = [0]
    def newlab(p):
        lab[0] += 1
        return f"L_{p}_{lab[0]}"

    def tag_fields():
        A(f"s_mul_i32 s{sC}, s{sTAG}, 0x85ebca6b")
        for r in range(4):
            A(f"s_bfe_u32 s{sTG[r]}, s{sTAG}, 0x{(8 << 16) | (8 * r):x}")
            A(f"s_bfe_u32 s{sT0}, s{sC}, 0x{(2 << 16) | (24 + 2 * r):x}")
            A(f"s_lshl_b32 s{sT0}, s{sT0}, 8")
            A(f"s_or_b32 s{sTG[r]}, s{sTG[r]}, s{sT0}")

    def pack4(regs, vmask, rnd=True):
        if rnd:
            for r in regs: A(f"v_add_u32 v{r}, 0x200, v{r}")
        for k, r in enumerate(regs):
            A(f"v_bfi_b32 v{r}, v{vmask}, s{sTG[k]}, v{r}")

    def untag(granules, vt):
        allr = []
        for g0 in granules:
            for k in range(4):
                A(f"v_xor_b32 v{g0+k}, s{sTG[k]}, v{g0+k}")
                allr.append(g0 + k)
        chains = [vt, vt + 1]
        n = len(allr)
        if n == 4:
            A(f"v_or3_b32 v{vt}, v{allr[0]}, v{allr[1]}, v{allr[2]}")
            A(f"v_or_b32 v{vt}, v{vt}, v{allr[3]}")
        else:
            half = n // 2
            for c, lst in zip(chains, (allr[:half], allr[half:])):
                A(f"v_or3_b32 v{c}, v{lst[0]}, v{lst[1]}, v{lst[2]}")
                i = 3
                while i < len(lst):
                    if i + 1 < len(lst):
                        A(f"v_or3_b32 v{c}, v{c}, v{lst[i]}, v{lst[i+1]}"); i += 2
                    else:
                        A(f"v_or_b32 v{c}, v{c}, v{lst[i]}"); i += 1
            A(f"v_or_b32 v{vt}, v{vt}, v{vt+1}")
        A(f"v_and_b32 v{vt}, 0x{TMASK:x}, v{vt}")
        return vt

    def poll_loop(issue, check, first_wait=None, pre_issued=False):
        L = newlab("poll"); D = newlab("done")
        A(f"s_mov_b32 s{sCNT}, {1 if cfg.nohop else cfg.spin_g}")
        if pre_issued:
            F = newlab("first")
            first_wait()
            A(f"s_branch {F}")
        A.label(L)
        A.flush_hazards(2)
        issue()
        A("s_waitcnt vmcnt(0)")
        if pre_issued:
            A.label(F)
        vt = check()
        A(f"v_cmp_ne_u32 vcc, 0, v{vt}")
        A("s_nop 1")
        A("s_and_b64 exec, exec, vcc")
        A(f"s_cbranch_execz {D}")
        if cfg.sleep_poll: A(f"s_sleep {cfg.sleep_poll}")
        A(f"s_sub_u32 s{sCNT}, s{sCNT}, 1")
        A(f"s_cmp_lg_u32 s{sCNT}, 0")
        A(f"s_cbranch_scc1 {L}")
        A.label(D)
        A("s_mov_b64 exec, -1")

    def xlane_reduce(op, regs, tmps, steps):
        for st in steps:
            if st[0] == 'r':
                n = int(st[1:])
                for r in regs:
                    A(f"{op}_dpp v{r}, v{r}, v{r} row_ror:{n} {DPPM}")
            else:
                ins = "v_permlane16_swap_b32" if st == 'x16' else "v_permlane32_swap_b32"
                for r, t in zip(regs, tmps):
                    A(f"v_mov_b32 v{t}, v{r}")
                for r, t in zip(regs, tmps):
                    A(f"{ins} v{r}, v{t}")
                for r, t in zip(regs, tmps):
                    A(f"{op} v{r}, v{r}, v{t}")

    def rows4_reduce(r0, r1, r2, r3):
        A(f"v_permlane16_swap_b32 v{r0}, v{r1}")
        A(f"v_permlane16_swap_b32 v{r2}, v{r3}")
        A(f"v_add_f32 v{r0}, v{r0}, v{r1}")
        A(f"v_add_f32 v{r2}, v{r2}, v{r3}")
        A(f"v_permlane32_swap_b32 v{r0}, v{r2}")
        A(f"v_add_f32 v{r0}, v{r0}, v{r2}")

    def lds_spin(addr_v, off, thresh, sleep=2):
        Lc = newlab("cspin"); Lcd = newlab("cdone")
        A(f"s_mov_b32 s{sCNT}, {cfg.spin_l}")
        A.label(Lc)
        A(f"ds_read_b32 v16, v{addr_v} offset:{off}")
        A("s_waitcnt lgkmcnt(0)")
        A(f"v_readfirstlane_b32 s{sT0}, v16")
        A(f"s_cmp_ge_u32 s{sT0}, {thresh}")
        A(f"s_cbranch_scc1 {Lcd}")
        A(f"s_sleep {sleep}")
        A(f"s_sub_u32 s{sCNT}, s{sCNT}, 1")
        A(f"s_cmp_lg_u32 s{sCNT}, 0")
        A(f"s_cbranch_scc1 {Lc}")
        A.label(Lcd)

    hdr = open("gated_mix__gqa_block_cached__swiglu_ffn__decode.s.ref").read().split("\n")
    for l in hdr:
        if l.startswith("; @launch"): break
        if l.startswith(";"): R(l)
    R(f"; @launch grid=(256,1,1) block=(576,1,1) lds={LDS_BYTES}")
    R('.amdgcn_target "amdgcn-amd-amdhsa--gfx950"')
    R(".text"); R(f".globl {NAME}"); R(".p2align 8"); R(f".type {NAME},@function"); R(f"{NAME}:")

    A("s_cmp_ge_u32 s2, 256")
    A("s_cbranch_scc1 L_end")
    if cfg.stamps:
        A(f"s_memrealtime s[{sST}:{sST+1}]")
        stamp_names["H"].append("start"); stamp_names["S"].append("start")
    A("s_load_dwordx16 s[16:31], s[0:1], 0")
    A("s_load_dwordx8 s[32:39], s[0:1], 64")
    A("s_load_dwordx2 s[40:41], s[0:1], 96")
    A("v_lshrrev_b32 v1, 6, v0")
    A("v_and_b32 v0, 63, v0")
    A(f"s_and_b32 s{sHKV}, s2, 7")
    A(f"v_readfirstlane_b32 s{sW}, v1")
    A(f"s_lshr_b32 s{sR}, s2, 3")
    A(f"s_lshr_b32 s{sB}, s{sR}, 3")
    A(f"s_and_b32 s{sS}, s{sR}, 7")
    A(f"s_lshr_b32 s{sKGL}, s{sR}, 1")
    A(f"s_lshr_b32 s{sHC}, s{sKGL}, 2")
    A(f"s_and_b32 s{sJP}, s{sKGL}, 3")
    A(f"s_and_b32 s{sCG}, s{sR}, 1")
    A(f"s_lshl_b32 s{sT0}, s{sHKV}, 4")
    A(f"s_add_u32 s{sKG}, s{sKGL}, s{sT0}")
    A(f"s_mul_i32 s{sFID}, s{sHKV}, 14")
    A(f"s_add_u32 s{sFID}, s{sFID}, s{sKGL}")
    if cfg.stamps: A(f"s_mov_b32 s{sWV}, s{sW}")
    A(f"s_cmp_eq_u32 s{sW}, 0")
    A("s_cbranch_scc1 L_helper")

    role[0] = "S"
    if cfg.b0 == "early": A("s_barrier")
    A(f"s_sub_u32 s{sW}, s{sW}, 1")
    vK, vV = 1, 2
    A("v_lshrrev_b32 v3, 2, v0")
    A("v_and_b32 v3, 3, v3")
    A("v_lshlrev_b32 v3, 8, v3")
    A("v_lshrrev_b32 v4, 4, v0")
    A("v_lshlrev_b32 v4, 6, v4")
    A("v_and_b32 v5, 3, v0")
    A("v_lshlrev_b32 v5, 4, v5")
    A(f"v_or_b32 v{vK}, v3, v4")
    A(f"v_or_b32 v{vK}, v{vK}, v5")
    A(f"v_lshlrev_b32 v{vV}, 4, v0")
    A(f"s_lshl_b32 s{sT0}, s{sB}, 3")
    A(f"s_add_u32 s{sT0}, s{sT0}, s{sHKV}")
    A(f"s_lshl_b32 s{sT0}, s{sT0}, 20")
    A(f"s_lshl_b32 s{sT1}, s{sW}, 17")
    A(f"s_add_u32 s{sT0}, s{sT0}, s{sT1}")
    A(f"s_lshl_b32 s{sT1}, s{sS}, 10")
    A(f"s_add_u32 s{sOFF}, s{sT0}, s{sT1}")
    A(f"s_mov_b32 s{sT2}, s{sOFF}")
    A("s_waitcnt lgkmcnt(0)")
    srd(SRD_A, S_K, 32 << 20)
    srd(SRD_B, S_V, 32 << 20)
    srd(SRD_WS, S_WS, ws_bytes)
    if cfg.b0 != "early": A("s_barrier")
    stamp("args")
    if cfg.kprio: A(f"s_setprio {cfg.kprio}")
    for u in range(16):
        A(f"buffer_load_dwordx4 a[{4*u}:{4*u+3}], v{vK}, s[{SRD_A}:{SRD_A+3}], s{sOFF} offen {cfg.nt}")
        if u < 15: A(f"s_add_u32 s{sOFF}, s{sOFF}, 0x2000")
    if cfg.kprio != cfg.vprio: A(f"s_setprio {cfg.vprio}")
    VB = 40
    for u in range(16):
        A(f"buffer_load_dwordx4 v[{VB+4*u}:{VB+4*u+3}], v{vV}, s[{SRD_B}:{SRD_B+3}], s{sT2} offen {cfg.nt}")
        if u < 15: A(f"s_add_u32 s{sT2}, s{sT2}, 0x2000")
    if cfg.vprio: A("s_setprio 0")
    A(f"v_mov_b32 v1, 0x{L_FLAG:x}")
    A("v_mov_b32 v2, 1")
    A("s_mov_b64 exec, 1")
    A("ds_add_u32 v1, v2 offset:8")
    A("s_mov_b64 exec, -1")
    stamp("issued")
    QF = 4
    A("v_lshrrev_b32 v3, 2, v0")
    A("v_and_b32 v3, 3, v3")
    A("v_lshrrev_b32 v8, 4, v0")
    A("v_xor_b32 v8, v8, v3")
    A("v_lshlrev_b32 v8, 6, v8")
    A("v_lshlrev_b32 v3, 8, v3")
    A("v_add_u32 v3, v3, v8")
    A("v_and_b32 v8, 3, v0")
    A("v_lshlrev_b32 v8, 4, v8")
    A("v_add_u32 v3, v3, v8")
    Lq = newlab("qspin"); Lqd = newlab("qdone")
    A(f"s_mov_b32 s{sCNT}, {cfg.spin_l}")
    A.label(Lq)
    A("ds_read_b64 v[8:9], v1")
    A(f"ds_read_b128 v[{QF}:{QF+3}], v3 offset:{L_QF}")
    A("s_waitcnt lgkmcnt(0)")
    A(f"v_readfirstlane_b32 s{sT0}, v8")
    A(f"v_readfirstlane_b32 s{sTAG}, v9")
    A(f"s_cmp_lg_u32 s{sT0}, 0")
    A(f"s_cbranch_scc1 {Lqd}")
    A(f"s_sleep {cfg.qsleep}")
    A(f"s_sub_u32 s{sCNT}, s{sCNT}, 1")
    A(f"s_cmp_lg_u32 s{sCNT}, 0")
    A(f"s_cbranch_scc1 {Lq}")
    A.label(Lqd)
    stamp("qready")
    tag_fields()
    DQ = [8, 12, 16, 20]
    SB = 24
    A("s_waitcnt vmcnt(16)")
    stamp("karr")
    def qk_mfma(u):
        d = DQ[u % 4]
        A(f"v_mfma_f32_16x16x32_bf16 v[{d}:{d+3}], a[{4*u}:{4*u+3}], v[{QF}:{QF+3}], 0")
    def qk_dpp(u, k):
        d = DQ[u % 4]
        if k == 0:
            A(f"v_mov_b32_dpp v{SB+u}, v{d} quad_perm:[0,0,0,0] {DPPM}")
        else:
            A(f"v_add_f32_dpp v{SB+u}, v{d+k}, v{SB+u} quad_perm:[{k},{k},{k},{k}] {DPPM}")
    qk_mfma(0); qk_mfma(1)
    for p in range(8):
        a, b_ = 2 * p, 2 * p + 1
        if p < 7: qk_mfma(a + 2)
        if p < 7: qk_mfma(b_ + 2)
        for k in range(4):
            qk_dpp(a, k); qk_dpp(b_, k)
    vM, vL, vT = 2, 3, 1
    A(f"s_mov_b32 s{sC}, {hexf(SCALE*LOG2E)}")
    A(f"v_max3_f32 v{vM}, v{SB}, v{SB+1}, v{SB+2}")
    A(f"v_max3_f32 v{vT}, v{SB+3}, v{SB+4}, v{SB+5}")
    A(f"v_max3_f32 v{vM}, v{vM}, v{SB+6}, v{SB+7}")
    A(f"v_max3_f32 v{vT}, v{vT}, v{SB+8}, v{SB+9}")
    A(f"v_max3_f32 v{vM}, v{vM}, v{SB+10}, v{SB+11}")
    A(f"v_max3_f32 v{vT}, v{vT}, v{SB+12}, v{SB+13}")
    A(f"v_max3_f32 v{vM}, v{vM}, v{SB+14}, v{SB+15}")
    A(f"v_max_f32 v{vM}, v{vM}, v{vT}")
    xlane_reduce("v_max_f32", [vM], [vT], ["x16", "x32"])
    A(f"v_mul_f32 v{vM}, s{sC}, v{vM}")
    for u in range(16):
        A(f"v_fma_f32 v{SB+u}, v{SB+u}, s{sC}, -v{vM}")
    for u in range(16):
        A(f"v_exp_f32 v{SB+u}, v{SB+u}")
    A(f"v_add_f32 v{vL}, v{SB}, v{SB+1}")
    A(f"v_add_f32 v{vT}, v{SB+2}, v{SB+3}")
    for u in range(4, 16, 2):
        A(f"v_add_f32 v{vL}, v{vL}, v{SB+u}")
        A(f"v_add_f32 v{vT}, v{vT}, v{SB+u+1}")
    A(f"v_add_f32 v{vL}, v{vL}, v{vT}")
    for k in range(8):
        A(f"v_cvt_pk_bf16_f32 v{SB+k}, v{SB+2*k}, v{SB+2*k+1}")
    xlane_reduce("v_add_f32", [vL], [vT], ["x16", "x32"])
    A(f"v_lshlrev_b32 v{vT}, 4, v0")
    A(f"s_lshl_b32 s{sT0}, s{sW}, 3")
    A(f"s_add_u32 s{sT0}, s{sT0}, 0x{L_STL:x}")
    A(f"v_add_u32 v{vT}, s{sT0}, v{vT}")
    A("s_mov_b64 exec, 0x1111")
    A(f"ds_write_b64 v{vT}, v[{vM}:{vL}]")
    A("s_mov_b64 exec, -1")
    stamp("smax")
    PF = [SB, SB + 4]
    TQ = [8, 12, 16, 20]
    A(f"s_mov_b32 s{sT0}, 0x05040100")
    A(f"s_mov_b32 s{sT1}, 0x07060302")
    for blk in range(2):
        A(f"s_waitcnt vmcnt({8 if blk == 0 else 0})")
        if blk == 1: stamp("varr")
        def perms(f):
            dw, hf = f >> 1, f & 1
            t = TQ[f % 4]
            sel = sT1 if hf else sT0
            for q in range(4):
                lo = VB + 4 * (8 * blk + 2 * q) + dw
                hi = VB + 4 * (8 * blk + 2 * q + 1) + dw
                A(f"v_perm_b32 v{t+q}, v{hi}, v{lo}, s{sel}")
        def pv_mfma(f):
            t = TQ[f % 4]
            c = "0" if blk == 0 else f"a[{4*f}:{4*f+3}]"
            A(f"v_mfma_f32_16x16x32_bf16 a[{4*f}:{4*f+3}], v[{PF[blk]}:{PF[blk]+3}], v[{t}:{t+3}], {c}")
        perms(0)
        for f in range(8):
            if f < 7: perms(f + 1)
            pv_mfma(f)
    A(f"v_lshlrev_b32 v{vT}, 2, v0")
    A(f"s_lshl_b32 s{sT0}, s{sW}, 11")
    A(f"s_add_u32 s{sT0}, s{sT0}, 0x{L_PART:x}")
    A(f"v_add_u32 v{vT}, s{sT0}, v{vT}")
    A(f"v_mov_b32 v39, 0x{TMASK:x}")
    for f in range(0, 8, 2):
        A(f"ds_write2st64_b32 v{vT}, a{4*f}, a{4*(f+1)} offset0:{f} offset1:{f+1}")
    if cfg.wby == "waves":
        Lnw = newlab("now")
        A(f"s_cmp_ge_u32 s{sW}, 3")
        A(f"s_cbranch_scc1 {Lnw}")
        A("v_lshrrev_b32 v16, 5, v0")
        A("v_and_b32 v17, 31, v0")
        A("v_lshlrev_b32 v19, 10, v16")
        for q in range(4):
            A(f"v_add_u32 v18, {2*q}, v16")
            A("v_lshlrev_b32 v18, 1, v18")
            A("v_xor_b32 v18, v18, v17")
            A("v_lshlrev_b32 v18, 4, v18")
            A(f"v_add_u32 v{40+q}, v18, v19")
        Lwd = newlab("wd")
        A(f"s_cmp_eq_u32 s{sW}, 2")
        A(f"s_cbranch_scc1 {Lwd}")
        srd(SRD_C, S_WO, 4096 * 512 * 2)
        A(f"s_lshl_b32 s{sT0}, s{sHKV}, 2")
        A(f"s_add_u32 s{sT0}, s{sT0}, s{sHC}")
        A(f"s_lshl_b32 s{sT0}, s{sT0}, 7")
        A(f"s_lshl_b32 s{sT1}, s{sJP}, 1")
        A(f"s_add_u32 s{sT0}, s{sT0}, s{sT1}")
        A(f"s_lshl_b32 s{sT0}, s{sT0}, 10")
        A(f"s_lshl_b32 s{sT1}, s{sCG}, 9")
        A(f"s_add_u32 s{sT0}, s{sT0}, s{sT1}")
        A(f"s_lshl_b32 s{sT1}, s{sW}, 16")
        A(f"s_add_u32 s{sT0}, s{sT0}, s{sT1}")
        A(f"s_lshl_b32 s{sT1}, s{sW}, 13")
        A(f"s_add_u32 s{sT1}, s{sT1}, 0x{L_WO:x}")
        for u in range(8):
            A(f"s_mov_b32 m0, s{sT1}")
            A(f"buffer_load_dwordx4 v{40+(u&3)}, s[{SRD_C}:{SRD_C+3}], s{sT0} offen {cfg.wnt} lds")
            if u < 7:
                A(f"s_add_u32 s{sT0}, s{sT0}, 0x2000")
                A(f"s_add_u32 s{sT1}, s{sT1}, 0x400")
        A(f"s_branch {Lnw}")
        A.label(Lwd)
        A.hist = []
        A(f"s_cmp_ge_u32 s{sKGL}, 14")
        A(f"s_cbranch_scc1 {Lnw}")
        srd(SRD_C, S_WD, 1792 * 512 * 2)
        A(f"s_lshl_b32 s{sT0}, s{sFID}, 14")
        A(f"s_lshl_b32 s{sT1}, s{sCG}, 9")
        A(f"s_add_u32 s{sT0}, s{sT0}, s{sT1}")
        for u in range(8):
            A(f"s_mov_b32 m0, 0x{L_WD + 1024*u:x}")
            A(f"buffer_load_dwordx4 v{40+(u&3)}, s[{SRD_C}:{SRD_C+3}], s{sT0} offen {cfg.wnt} lds")
            if u < 7: A(f"s_add_u32 s{sT0}, s{sT0}, 0x800")
        A.label(Lnw)
        A.hist = []
    Lg = newlab("gath"); Lpost = newlab("post")
    A(f"s_cmp_ge_u32 s{sW}, 4")
    A(f"s_cbranch_scc1 {Lg}")
    PB = 40
    A("v_lshrrev_b32 v8, 4, v0")
    A("v_lshlrev_b32 v12, 14, v8")
    A("v_lshlrev_b32 v8, 6, v8")
    A("v_and_b32 v9, 7, v0")
    A("v_lshlrev_b32 v9, 3, v9")
    A("v_add_u32 v8, v8, v9")
    A("v_lshlrev_b32 v9, 2, v0")
    A(f"s_lshl_b32 s{sT0}, s{sW}, 9")
    A(f"s_add_u32 s{sT0}, s{sT0}, 0x{L_PART:x}")
    A(f"v_add_u32 v9, s{sT0}, v9")
    A("v_and_b32 v13, 14, v0")
    A("v_lshlrev_b32 v13, 3, v13")
    A("v_add_u32 v12, v12, v13")
    A(f"s_lshl_b32 s{sT1}, s{sHKV}, 16")
    A(f"s_lshl_b32 s{sT2}, s{sW}, 12")
    A(f"s_add_u32 s{sT1}, s{sT1}, s{sT2}")
    A(f"s_lshl_b32 s{sT2}, s{sR}, 7")
    A(f"s_add_u32 s{sT1}, s{sT1}, s{sT2}")
    A(f"s_add_u32 s{sT1}, s{sT1}, 0x{WS_OA:x}")
    A(f"s_lshl_b32 s{sT0}, s{sHKV}, 11")
    A(f"s_lshl_b32 s{sT2}, s{sR}, 4")
    A(f"s_add_u32 s{sT0}, s{sT0}, s{sT2}")
    A(f"s_add_u32 s{sT0}, s{sT0}, 0x{WS_ST:x}")
    A("v_lshlrev_b32 v24, 5, v0")
    A("s_waitcnt lgkmcnt(0)")
    stamp("pvdone")
    A("s_barrier")
    A(f"ds_read_b64 v[10:11], v8 offset:{L_STL}")
    for w in range(8):
        A(f"ds_read2st64_b32 v[{PB+2*w}:{PB+2*w+1}], v9 offset0:{8*w} offset1:{8*w+1}")
    A("s_waitcnt lgkmcnt(8)")
    A("v_mov_b32 v13, v10")
    xlane_reduce("v_max_f32", [13], [None], ["r1", "r2", "r4"])
    A("v_sub_f32 v14, v10, v13")
    A("v_exp_f32 v14, v14")
    A("v_mul_f32 v15, v11, v14")
    xlane_reduce("v_add_f32", [15], [None], ["r1", "r2", "r4"])
    Lns = newlab("nostat")
    A(f"s_cmp_lg_u32 s{sW}, 0")
    A(f"s_cbranch_scc1 {Lns}")
    A("v_and_b32 v21, 0xfffffc00, v13")
    A("v_and_b32 v23, 0xfffffc00, v15")
    A("v_sub_f32 v21, v13, v21")
    A("v_sub_f32 v23, v15, v23")
    A("v_mov_b32 v20, v13")
    A("v_mov_b32 v22, v15")
    pack4([20, 21, 22, 23], 39, rnd=False)
    A("s_mov_b32 exec_lo, 0x00010001")
    A("s_mov_b32 exec_hi, 0x00010001")
    A(f"buffer_store_dwordx4 v[20:23], v24, s[{SRD_WS}:{SRD_WS+3}], s{sT0} offen sc1")
    A("s_mov_b64 exec, -1")
    A.label(Lns)
    A.hist = []
    A("s_waitcnt lgkmcnt(0)")
    A(f"v_mul_f32_dpp v16, v14, v{PB} row_newbcast:0 {DPPM}")
    A(f"v_mul_f32_dpp v17, v14, v{PB+1} row_newbcast:0 {DPPM}")
    A(f"v_mul_f32_dpp v20, v14, v{PB+2} row_newbcast:1 {DPPM}")
    A(f"v_mul_f32_dpp v21, v14, v{PB+3} row_newbcast:1 {DPPM}")
    for w in range(2, 8):
        d0, d1 = (16, 17) if w % 2 == 0 else (20, 21)
        A(f"v_fmac_f32_dpp v{d0}, v14, v{PB+2*w} row_newbcast:{w} {DPPM}")
        A(f"v_fmac_f32_dpp v{d1}, v14, v{PB+2*w+1} row_newbcast:{w} {DPPM}")
    A("v_add_f32 v16, v16, v20")
    A("v_add_f32 v17, v17, v21")
    A(f"v_mov_b32_dpp v18, v16 quad_perm:[1,0,3,2] {DPPM}")
    A(f"v_mov_b32_dpp v19, v17 quad_perm:[1,0,3,2] {DPPM}")
    pack4([16, 17, 18, 19], 39)
    A("s_mov_b32 exec_lo, 0x55555555")
    A("s_mov_b32 exec_hi, 0x55555555")
    A(f"buffer_store_dwordx4 v[16:19], v12, s[{SRD_WS}:{SRD_WS+3}], s{sT1} offen sc1")
    A("s_mov_b64 exec, -1")
    stamp("pubA")
    if cfg.stamps: stamp("gathA")
    A(f"s_branch {Lpost}")
    A.label(Lg)
    A.hist = []
    A(f"s_sub_u32 s{sT0}, s{sW}, 4")
    A(f"s_lshl_b32 s{sT1}, s{sHKV}, 16")
    A(f"s_lshl_b32 s{sT2}, s{sHC}, 14")
    A(f"s_add_u32 s{sT1}, s{sT1}, s{sT2}")
    A(f"s_lshl_b32 s{sT2}, s{sJP}, 12")
    A(f"s_add_u32 s{sT1}, s{sT1}, s{sT2}")
    A(f"s_lshl_b32 s{sT2}, s{sT0}, 10")
    A(f"s_add_u32 s{sT1}, s{sT1}, s{sT2}")
    A(f"s_add_u32 s{sT2}, s{sT1}, 0x{WS_OA:x}")
    A(f"s_lshl_b32 s{sT1}, s{sHKV}, 11")
    A(f"s_lshl_b32 s{sT3}, s{sHC}, 9")
    A(f"s_add_u32 s{sT1}, s{sT1}, s{sT3}")
    A(f"s_lshl_b32 s{sT3}, s{sT0}, 7")
    A(f"s_add_u32 s{sT1}, s{sT1}, s{sT3}")
    A(f"s_add_u32 s{sT3}, s{sT1}, 0x{WS_ST:x}")
    A("v_lshlrev_b32 v4, 4, v0")
    A("v_lshrrev_b32 v5, 3, v0")
    A("v_lshlrev_b32 v5, 4, v5")
    A("v_and_b32 v6, 3, v0")
    A("v_lshlrev_b32 v6, 4, v6")
    A("v_and_b32 v7, 4, v0")
    A("v_lshlrev_b32 v7, 1, v7")
    A("v_add_u32 v6, v6, v7")
    A("v_lshrrev_b32 v7, 4, v0")
    A("v_lshlrev_b32 v7, 1, v7")
    A("v_add_u32 v6, v6, v7")
    A(f"s_lshl_b32 s{sT0}, s{sT0}, 6")
    A(f"s_add_u32 s{sT0}, s{sT0}, 0x{L_OB:x}")
    A(f"v_add_u32 v6, s{sT0}, v6")
    A("s_waitcnt lgkmcnt(0)")
    if cfg.stamps:
        stamp_names["S"] = stamp_names["S"][:-3]
    stamp("pvdone")
    A("s_barrier")
    stamp("pubA")
    def g_issue():
        A(f"buffer_load_dwordx4 v[8:11], v4, s[{SRD_WS}:{SRD_WS+3}], s{sT2} offen sc1")
        A(f"buffer_load_dwordx4 v[12:15], v5, s[{SRD_WS}:{SRD_WS+3}], s{sT3} offen sc1")
    def g_check():
        return untag([8, 12], 16)
    poll_loop(g_issue, g_check)
    stamp("gathA")
    A("v_add_f32 v12, v12, v13")
    A("v_add_f32 v14, v14, v15")
    A("v_mov_b32 v16, v12")
    xlane_reduce("v_max_f32", [16], [17], ["r8", "x16", "x32"])
    A("v_sub_f32 v18, v12, v16")
    A("v_exp_f32 v18, v18")
    A("s_nop 0")
    for r in (8, 9, 10, 11, 14):
        A(f"v_mul_f32 v{r}, v{r}, v18")
    for r in (8, 9, 10, 11, 14):
        A(f"v_add_f32_dpp v{r}, v{r}, v{r} row_ror:8 {DPPM}")
    A("v_mov_b32 v20, v14")
    A("v_permlane16_swap_b32 v14, v20")
    A("v_permlane16_swap_b32 v8, v9")
    A("v_permlane16_swap_b32 v10, v11")
    A("v_add_f32 v14, v14, v20")
    A("v_add_f32 v8, v8, v9")
    A("v_add_f32 v10, v10, v11")
    A("v_mov_b32 v20, v14")
    A("v_permlane32_swap_b32 v8, v10")
    A("v_permlane32_swap_b32 v14, v20")
    A("v_add_f32 v8, v8, v10")
    A("v_add_f32 v14, v14, v20")
    A("v_rcp_f32 v14, v14")
    A("s_nop 0")
    A("v_mul_f32 v8, v8, v14")
    A("v_cvt_pk_bf16_f32 v8, v8, v8")
    A("s_mov_b32 exec_lo, 0x00ff00ff")
    A("s_mov_b32 exec_hi, 0x00ff00ff")
    A("ds_write_b16 v6, v8")
    A("s_mov_b64 exec, -1")
    A.label(Lpost)
    A.hist = []
    A("v_and_b32 v20, 3, v0")
    A("v_lshrrev_b32 v21, 4, v0")
    A("v_lshlrev_b32 v22, 6, v20")
    A("v_lshlrev_b32 v23, 4, v21")
    A(f"v_add_u32 v22, v22, v23")
    A("v_lshlrev_b32 v23, 5, v20")
    A("v_lshlrev_b32 v24, 3, v21")
    A("v_add_u32 v23, v23, v24")
    A("v_lshrrev_b32 v24, 2, v0")
    A("v_and_b32 v25, 7, v24")
    A("v_lshlrev_b32 v25, 1, v25")
    A("v_lshrrev_b32 v26, 1, v20")
    A(f"s_lshl_b32 s{sT0}, s{sW}, 2")
    A(f"v_add_u32 v26, s{sT0}, v26")
    A("v_xor_b32 v26, v26, v25")
    A("v_lshlrev_b32 v26, 4, v26")
    A("v_lshlrev_b32 v24, 9, v24")
    A("v_add_u32 v24, v24, v26")
    A("v_and_b32 v26, 1, v20")
    A("v_lshlrev_b32 v26, 3, v26")
    A("v_add_u32 v24, v24, v26")
    A("v_xor_b32 v25, 32, v24")
    A("v_and_b32 v26, 31, v0")
    A("v_lshlrev_b32 v26, 4, v26")
    A(f"s_lshl_b32 s{sT0}, s{sKG}, 13")
    A(f"s_lshl_b32 s{sT1}, s{sCG}, 12")
    A(f"s_add_u32 s{sT0}, s{sT0}, s{sT1}")
    A(f"s_lshl_b32 s{sT1}, s{sW}, 9")
    A(f"s_add_u32 s{sT0}, s{sT0}, s{sT1}")
    A(f"s_add_u32 s{sT2}, s{sT0}, 0x{WS_YB:x}")
    A(f"v_mov_b32 v27, 0x{L_G:x}")
    A(f"s_mov_b32 s{sM0}, 0xffff0000")
    A(f"s_mov_b32 s{sM0+1}, 0xffff0000")
    if cfg.wby == "waves":
        Lw0 = newlab("w0"); Lw1 = newlab("w1")
        A(f"s_cmp_eq_u32 s{sW}, 0")
        A(f"s_cbranch_scc1 {Lw0}")
        A("s_waitcnt vmcnt(1) lgkmcnt(0)")
        A(f"s_branch {Lw1}")
        A.label(Lw0)
        A("s_waitcnt vmcnt(2) lgkmcnt(0)")
        A.label(Lw1)
    else:
        A("s_waitcnt lgkmcnt(0)")
    A("s_barrier")
    stamp("B2")
    A(f"ds_read_b128 v[8:11], v22 offset:{L_OB}")
    A(f"ds_read_b64_tr_b16 v[40:41], v24 offset:{L_WO}")
    A(f"ds_read_b64_tr_b16 v[42:43], v24 offset:{L_WO+8192}")
    A(f"ds_read_b64_tr_b16 v[44:45], v25 offset:{L_WO}")
    A(f"ds_read_b64_tr_b16 v[46:47], v25 offset:{L_WO+8192}")
    A("ds_read_b128 v[28:31], v27")
    Lnf3 = newlab("noffn3"); Lj3 = newlab("join3")
    A(f"s_cmp_ge_u32 s{sKGL}, 14")
    A(f"s_cbranch_scc1 {Lnf3}")
    A(f"ds_read_b64 v[12:13], v23 offset:{L_HB}")
    A(f"ds_read_b64_tr_b16 v[48:49], v24 offset:{L_WD}")
    A(f"ds_read_b64_tr_b16 v[50:51], v25 offset:{L_WD}")
    A("ds_read_b128 v[32:35], v27 offset:16")
    A("s_waitcnt lgkmcnt(5)")
    A("v_mfma_f32_16x16x32_bf16 v[52:55], v[8:11], v[40:43], 0")
    A("v_mfma_f32_16x16x32_bf16 v[56:59], v[8:11], v[44:47], 0")
    A("s_waitcnt lgkmcnt(1)")
    A("v_mfma_f32_16x16x16_bf16 v[60:63], v[12:13], v[48:49], 0")
    A("v_mfma_f32_16x16x16_bf16 v[64:67], v[12:13], v[50:51], 0")
    A("s_waitcnt lgkmcnt(0)")
    for r in range(4):
        A(f"v_cndmask_b32 v{52+r}, v{52+r}, v{56+r}, s[{sM0}:{sM0+1}]")
    for r in range(4):
        A(f"v_cndmask_b32 v{60+r}, v{60+r}, v{64+r}, s[{sM0}:{sM0+1}]")
    for r in range(4):
        A(f"v_mul_f32 v{52+r}, v{52+r}, v{28+r}")
    for r in range(4):
        A(f"v_fmac_f32 v{52+r}, v{60+r}, v{32+r}")
    A(f"s_branch {Lj3}")
    A.label(Lnf3)
    A.hist = []
    A("s_waitcnt lgkmcnt(1)")
    A("v_mfma_f32_16x16x32_bf16 v[52:55], v[8:11], v[40:43], 0")
    A("v_mfma_f32_16x16x32_bf16 v[56:59], v[8:11], v[44:47], 0")
    A("s_waitcnt lgkmcnt(0)")
    for r in range(4):
        A(f"v_cndmask_b32 v{52+r}, v{52+r}, v{56+r}, s[{sM0}:{sM0+1}]")
    for r in range(4):
        A(f"v_mul_f32 v{52+r}, v{52+r}, v{28+r}")
    A.label(Lj3)
    A.hist = []
    A("s_nop 0")
    pack4([52, 53, 54, 55], 39)
    A("s_mov_b32 exec_hi, 0")
    A(f"buffer_store_dwordx4 v[52:55], v26, s[{SRD_WS}:{SRD_WS+3}], s{sT2} offen sc1")
    A("s_mov_b64 exec, -1")
    stamp("pubB")
    write_stamps()
    A("s_endpgm")

    A.label("L_helper")
    role[0] = "H"
    A.hist = []
    A(f"s_setprio {cfg.hprio}")
    A(f"v_mov_b32 v1, 0x{L_FLAG:x}")
    A("v_mov_b32 v2, 0")
    A("v_mov_b32 v3, 0")
    A("ds_write_b64 v1, v[2:3]")
    A("ds_write_b32 v1, v2 offset:8")
    A("v_lshlrev_b32 v4, 4, v0")
    A("v_lshrrev_b32 v5, 3, v0")
    A("v_and_b32 v6, 6, v5")
    A("v_and_b32 v7, 7, v0")
    A("v_xor_b32 v6, v6, v7")
    A("v_lshlrev_b32 v6, 4, v6")
    A("v_lshlrev_b32 v7, 13, v5")
    A("v_add_u32 v7, v7, v6")
    A(f"v_mul_u32_u24 v8, 3584, v5")
    A("v_add_u32 v8, v8, v6")
    A(f"s_and_b32 s{sT0}, s{sR}, 3")
    A(f"s_lshl_b32 s{sT0}, s{sT0}, 20")
    A(f"s_lshl_b32 s{sT1}, s{sHKV}, 10")
    A(f"s_add_u32 s{sT0}, s{sT0}, s{sT1}")
    A(f"s_lshr_b32 s{sT1}, s{sR}, 2")
    A(f"s_lshl_b32 s{sT1}, s{sT1}, 7")
    A(f"s_add_u32 s{sOFF}, s{sT0}, s{sT1}")
    A("s_waitcnt lgkmcnt(0)")
    if cfg.b0 == "early": A("s_barrier")
    srd(SRD_WS, S_WS, ws_bytes)
    srd(SRD_A, S_X, 4096)
    srd(SRD_B, S_WQ, 512 * 4096 * 2)
    stamp("args")
    A("v_mov_b32 v3, 0")
    A(f"buffer_load_dword v2, v3, s[{SRD_WS}:{SRD_WS+3}], 0 offen sc1")
    for b in range(4):
        A(f"s_mov_b32 m0, 0x{L_XS + 32*b:x}")
        A(f"buffer_load_dwordx4 v4, s[{SRD_A}:{SRD_A+3}], 0 offen offset:{1024*b} lds")
    for t in range(16):
        A(f"s_mov_b32 m0, 0x{L_T0 + 1024*t:x}")
        A(f"buffer_load_dwordx4 v7, s[{SRD_B}:{SRD_B+3}], s{sOFF} offen {cfg.wnt} lds")
        if t < 15: A(f"s_add_u32 s{sOFF}, s{sOFF}, 0x10000")
    if cfg.b0 == "q": A("s_barrier")
    srd(SRD_C, S_GW, 1024)
    A(f"s_mov_b32 m0, 0x{L_GW:x}")
    A(f"buffer_load_dwordx4 v4, s[{SRD_C}:{SRD_C+3}], 0 offen lds")
    def ffn_issue():
        Lnf = newlab("noffn")
        A(f"s_cmp_ge_u32 s{sR}, 28")
        A(f"s_cbranch_scc1 {Lnf}")
        A(f"s_cmp_ge_u32 s{sHKV}, 4")
        A(f"s_cselect_b32 s{SRD_D}, s{S_WU}, s{S_WG}")
        A(f"s_cselect_b32 s{SRD_D+1}, s{S_WU+1}, s{S_WG+1}")
        A(f"s_mov_b32 s{SRD_D+2}, 0x{512*1792*2:x}")
        A(f"s_mov_b32 s{SRD_D+3}, 0x00020000")
        A(f"s_and_b32 s{sT0}, s{sHKV}, 3")
        A(f"s_mul_i32 s{sT0}, s{sT0}, {128*3584}")
        A(f"s_lshl_b32 s{sT1}, s{sR}, 7")
        A(f"s_add_u32 s{sOFF}, s{sT0}, s{sT1}")
        for t in range(16):
            A(f"s_mov_b32 m0, 0x{L_T1 + 1024*t:x}")
            A(f"buffer_load_dwordx4 v8, s[{SRD_D}:{SRD_D+3}], s{sOFF} offen {cfg.wnt} lds")
            if t < 15: A(f"s_add_u32 s{sOFF}, s{sOFF}, 0x{8*3584:x}")
        A.label(Lnf)
    assert cfg.ftrig == -1
    ffn_issue()
    if cfg.b0 == "all": A("s_barrier")
    stamp("issued")
    hasF = f"s_cmp_lt_u32 s{sR}, 28"
    def wait_vm(n_noffn, n_ffn):
        La = newlab("wa"); Lb = newlab("wb")
        A(hasF)
        A(f"s_cbranch_scc1 {La}")
        A(f"s_waitcnt vmcnt({n_noffn})")
        A(f"s_branch {Lb}")
        A.label(La)
        A(f"s_waitcnt vmcnt({n_ffn})")
        A.label(Lb)
    A("v_and_b32 v9, 3, v0")
    A(f"v_mul_u32_u24 v9, {XP}, v9")
    A("v_lshrrev_b32 v10, 4, v0")
    A("v_lshlrev_b32 v10, 3, v10")
    A("v_add_u32 v9, v9, v10")
    A(f"s_and_b32 s{sT0}, s{sR}, 3")
    A(f"s_lshl_b32 s{sT0}, s{sT0}, 8")
    A(f"v_add_u32 v10, s{sT0}, v9")
    A(f"s_and_b32 s{sT0}, s{sHKV}, 3")
    A(f"s_lshl_b32 s{sT0}, s{sT0}, 8")
    A(f"v_add_u32 v12, s{sT0}, v9")
    A("v_lshrrev_b32 v13, 2, v0")
    A("v_and_b32 v14, 6, v13")
    A("v_lshlrev_b32 v13, 7, v13")
    A("v_bfe_u32 v15, v0, 1, 1")
    A("v_add_u32 v14, v14, v15")
    A("v_lshlrev_b32 v14, 4, v14")
    A("v_add_u32 v13, v13, v14")
    A("v_and_b32 v14, 1, v0")
    A("v_lshlrev_b32 v14, 3, v14")
    TA = [32, 33, 34, 35]
    A(f"v_add_u32 v{TA[0]}, v13, v14")
    for c in range(1, 4):
        A(f"v_xor_b32 v{TA[c]}, {32*c}, v{TA[0]}")
    A(f"v_mov_b32 v39, 0x{TMASK:x}")
    A(f"s_mov_b32 s{sM0}, 0xf0f0f0f0")
    A(f"s_mov_b32 s{sM0+1}, 0xf0f0f0f0")
    A(f"s_mov_b32 s{sM1}, 0xff00ff00")
    A(f"s_mov_b32 s{sM1+1}, 0xff00ff00")
    wait_vm(17, 33)
    A(f"v_readfirstlane_b32 s{sTAG}, v2")
    A(f"s_add_u32 s{sTAG}, s{sTAG}, 0x{TAGC:x}")
    for t in range(4):
        A(f"ds_read2_b64 a[{4*t}:{4*t+3}], v10 offset0:{8*t} offset1:{8*t+4}")
    for t in range(4):
        A(f"ds_read2_b64 a[{16+4*t}:{16+4*t+3}], v12 offset0:{8*t} offset1:{8*t+4}")
    A(f"v_mov_b32 v11, s{sTAG}")
    A(f"ds_write_b32 v1, v11 offset:4")
    tag_fields()

    ACC = [16, 20, 24, 28]
    def tile_mfma(lbase, abase):
        steps = [(ks, c) for ks in range(4) for c in range(4)]
        def rd(n):
            ks, c = steps[n]
            A(f"ds_read_b64_tr_b16 v[{40+4*n}:{41+4*n}], v{TA[c]} offset:{lbase + 4096*ks}")
            A(f"ds_read_b64_tr_b16 v[{42+4*n}:{43+4*n}], v{TA[c]} offset:{lbase + 4096*ks + 2048}")
        for n in range(6): rd(n)
        for n in range(16):
            ks, c = steps[n]
            rem = min(16, n + 6) - (n + 1)
            A(f"s_waitcnt lgkmcnt({2*rem})")
            acc = ACC[c]
            cc = "0" if ks == 0 else f"v[{acc}:{acc+3}]"
            A(f"v_mfma_f32_16x16x32_bf16 v[{acc}:{acc+3}], v[{40+4*n}:{43+4*n}], a[{abase+4*ks}:{abase+4*ks+3}], {cc}")
            if n + 6 < 16: rd(n + 6)

    def tile_publish(vaddr, soff):
        for r in range(4):
            A(f"v_cndmask_b32 v{16+r}, v{16+r}, v{20+r}, s[{sM0}:{sM0+1}]")
        for r in range(4):
            A(f"v_cndmask_b32 v{24+r}, v{24+r}, v{28+r}, s[{sM0}:{sM0+1}]")
        for r in range(4):
            A(f"v_cndmask_b32 v{16+r}, v{16+r}, v{24+r}, s[{sM1}:{sM1+1}]")
        pack4([16, 17, 18, 19], 39)
        A(f"buffer_store_dwordx4 v[16:19], v{vaddr}, s[{SRD_WS}:{SRD_WS+3}], s{soff} offen sc1")

    A("v_and_b32 v13, 3, v0")
    A("v_bfe_u32 v14, v0, 2, 2")
    A("v_lshrrev_b32 v15, 4, v0")
    A("v_lshlrev_b32 v15, 4, v15")
    A("v_lshlrev_b32 v36, 13, v13")
    A("v_lshlrev_b32 v37, 6, v14")
    A("v_add3_u32 v36, v36, v37, v15")
    A("v_lshlrev_b32 v37, 11, v14")
    A("v_lshlrev_b32 v38, 6, v13")
    A("v_add3_u32 v37, v37, v38, v15")
    A(f"s_lshl_b32 s{sT1}, s{sHKV}, 15")
    A(f"s_and_b32 s{sT2}, s{sR}, 3")
    A(f"s_lshl_b32 s{sT2}, s{sT2}, 11")
    A(f"s_add_u32 s{sT1}, s{sT1}, s{sT2}")
    A(f"s_lshr_b32 s{sT2}, s{sR}, 2")
    A(f"s_lshl_b32 s{sT2}, s{sT2}, 8")
    A(f"s_add_u32 s{sT1}, s{sT1}, s{sT2}")
    A(f"s_add_u32 s{sT2}, s{sT1}, 0x{WS_Q:x}")
    A("s_waitcnt lgkmcnt(0)")
    wait_vm(1, 17)
    stamp("tile")
    tile_mfma(L_T0, 0)
    tile_publish(36, sT2)
    stamp("pubQ")
    A(f"s_lshl_b32 s{sT0}, s{sHKV}, 15")
    A(f"s_lshl_b32 s{sT1}, s{sB}, 13")
    A(f"s_add_u32 s{sT0}, s{sT0}, s{sT1}")
    A(f"s_add_u32 s{sT3}, s{sT0}, 0x{WS_Q:x}")
    A(f"s_add_u32 s{sOFF}, s{sT3}, 4096")
    QG = 104 - 32
    def q_issue():
        for u in range(8):
            so = sT3 if u < 4 else sOFF
            A(f"buffer_load_dwordx4 a[{32+4*u}:{32+4*u+3}], v4, s[{SRD_WS}:{SRD_WS+3}], s{so} offen offset:{1024*(u&3)} sc1")
    if not cfg.qlate: q_issue()
    Lnf2 = newlab("noffn2")
    A(f"s_cmp_ge_u32 s{sR}, 28")
    A(f"s_cbranch_scc1 {Lnf2}")
    A(f"s_waitcnt vmcnt({1 if cfg.qlate else 9})")
    tile_mfma(L_T1, 16)
    A(f"s_lshl_b32 s{sT0}, s{sR}, 13")
    A(f"s_lshr_b32 s{sT1}, s{sHKV}, 2")
    A(f"s_lshl_b32 s{sT1}, s{sT1}, 10")
    A(f"s_add_u32 s{sT0}, s{sT0}, s{sT1}")
    A(f"s_and_b32 s{sT1}, s{sHKV}, 3")
    A(f"s_lshl_b32 s{sT1}, s{sT1}, 8")
    A(f"s_add_u32 s{sT0}, s{sT0}, s{sT1}")
    A(f"s_add_u32 s{sT2}, s{sT0}, 0x{WS_F:x}")
    tile_publish(37, sT2)
    A.label(Lnf2)
    A.hist = []
    A("s_nop 7")
    stamp("ffn")
    def q_check():
        for u in range(8):
            for k in range(4):
                A(f"v_accvgpr_read_b32 v{40+4*u+k}, a{32+4*u+k}")
        return untag([40 + 4 * u for u in range(8)], 16)
    if cfg.qlate:
        poll_loop(q_issue, q_check)
    else:
        poll_loop(q_issue, q_check, first_wait=lambda: wait_vm(0, 1), pre_issued=True)
    for hf in range(2):
        for k in range(4):
            A(f"v_add_f32 v{40+4*hf+k}, v{40+4*hf+k}, v{48+4*hf+k}")
            A(f"v_add_f32 v{56+4*hf+k}, v{56+4*hf+k}, v{64+4*hf+k}")
    for hf in range(2):
        for k in range(4):
            A(f"v_add_f32 v{40+4*hf+k}, v{40+4*hf+k}, v{56+4*hf+k}")
    for hf in range(2):
        A(f"v_cvt_pk_bf16_f32 v{40+4*hf}, v{40+4*hf}, v{41+4*hf}")
        A(f"v_cvt_pk_bf16_f32 v{41+4*hf}, v{42+4*hf}, v{43+4*hf}")
    A("v_lshrrev_b32 v16, 5, v0")
    A("v_bfe_u32 v17, v0, 3, 2")
    A("v_and_b32 v18, 7, v0")
    A("v_lshlrev_b32 v18, 3, v18")
    A("v_xor_b32 v19, v17, v16")
    A("v_lshlrev_b32 v19, 6, v19")
    A("v_lshlrev_b32 v20, 8, v16")
    A("v_add3_u32 v19, v19, v20, v18")
    A("v_xor_b32 v20, 0x80, v19")
    A(f"ds_write_b64 v19, v[40:41] offset:{L_QF}")
    A(f"ds_write_b64 v20, v[44:45] offset:{L_QF + 512}")
    A("v_mov_b32 v17, 1")
    A("s_waitcnt lgkmcnt(0)")
    A("ds_write_b32 v1, v17")
    stamp("qpolled")
    A("v_lshrrev_b32 v10, 4, v0")
    A("v_lshlrev_b32 v10, 3, v10")
    A(f"v_add_u32 v26, 0x{L_GW:x}, v10")
    for t in range(16):
        A(f"ds_read2_b64 a[{4*t}:{4*t+3}], v9 offset0:{8*t} offset1:{8*t+4}")
    for t in range(16):
        A(f"ds_read2_b64 v[{40+4*t}:{43+4*t}], v26 offset0:{8*t} offset1:{8*t+4}")
    A("s_waitcnt lgkmcnt(0)")
    for t in range(16):
        acc = 16 if t % 2 == 0 else 20
        c = "0" if t < 2 else f"v[{acc}:{acc+3}]"
        A(f"v_mfma_f32_16x16x32_bf16 v[{acc}:{acc+3}], v[{40+4*t}:{43+4*t}], a[{4*t}:{4*t+3}], {c}")
    A("v_add_f32 v16, v16, v20")
    A("v_cvt_pk_bf16_f32 v16, v16, v16")
    A("v_lshlrev_b32 v16, 16, v16")
    A(f"v_mul_f32 v17, {hexf(-LOG2E)}, v16")
    A("v_exp_f32 v17, v17")
    A("s_nop 0")
    A("v_add_f32 v17, 1.0, v17")
    A("v_rcp_f32 v17, v17")
    A("s_nop 0")
    A("v_cvt_pk_bf16_f32 v17, v17, v17")
    A("v_lshlrev_b32 v17, 16, v17")
    A("v_sub_f32 v18, 1.0, v17")
    A("v_cvt_pk_bf16_f32 v18, v18, v18")
    A("v_lshlrev_b32 v18, 16, v18")
    A("v_lshlrev_b32 v19, 2, v0")
    A("s_mov_b64 exec, 0xf")
    A(f"ds_write_b32 v19, v17 offset:{L_G}")
    A(f"ds_write_b32 v19, v18 offset:{L_OMG}")
    A("s_mov_b64 exec, -1")
    Lnh = newlab("noh")
    A(f"s_cmp_ge_u32 s{sKGL}, 14")
    A(f"s_cbranch_scc1 {Lnh}")
    A(f"s_lshl_b32 s{sT0}, s{sFID}, 11")
    A(f"s_add_u32 s{sT3}, s{sT0}, 0x{WS_F:x}")
    def h_issue():
        A(f"buffer_load_dwordx4 v[40:43], v4, s[{SRD_WS}:{SRD_WS+3}], s{sT3} offen sc1")
        A(f"buffer_load_dwordx4 v[44:47], v4, s[{SRD_WS}:{SRD_WS+3}], s{sT3} offen offset:1024 sc1")
    def h_check():
        return untag([40, 44], 16)
    poll_loop(h_issue, h_check)
    xlane_reduce("v_add_f32", list(range(40, 48)), list(range(48, 56)), ["x16", "x32"])
    A(f"s_mov_b32 s{sT0}, 0xffff0000")
    A("v_cvt_pk_bf16_f32 v40, v40, v41")
    A("v_cvt_pk_bf16_f32 v42, v42, v43")
    A("v_cvt_pk_bf16_f32 v44, v44, v45")
    A("v_cvt_pk_bf16_f32 v46, v46, v47")
    for p in (40, 42, 44, 46):
        A(f"v_and_b32 v{p+1}, s{sT0}, v{p}")
        A(f"v_lshlrev_b32 v{p}, 16, v{p}")
    for r in range(4):
        A(f"v_mul_f32 v{48+r}, {hexf(-LOG2E)}, v{40+r}")
    for r in range(4):
        A(f"v_exp_f32 v{48+r}, v{48+r}")
    for r in range(4):
        A(f"v_add_f32 v{48+r}, 1.0, v{48+r}")
    for r in range(4):
        A(f"v_rcp_f32 v{48+r}, v{48+r}")
    for r in range(4):
        A(f"v_mul_f32 v{40+r}, v{40+r}, v{48+r}")
    A("v_cvt_pk_bf16_f32 v40, v40, v41")
    A("v_cvt_pk_bf16_f32 v42, v42, v43")
    for p in (40, 42):
        A(f"v_and_b32 v{p+1}, s{sT0}, v{p}")
        A(f"v_lshlrev_b32 v{p}, 16, v{p}")
    for r in range(4):
        A(f"v_mul_f32 v{40+r}, v{40+r}, v{44+r}")
    A("v_cvt_pk_bf16_f32 v40, v40, v41")
    A("v_cvt_pk_bf16_f32 v41, v42, v43")
    A("v_lshlrev_b32 v25, 3, v0")
    A("s_mov_b64 exec, 0xffff")
    A(f"ds_write_b64 v25, v[40:41] offset:{L_HB}")
    A("s_mov_b64 exec, -1")
    A.label(Lnh)
    A.hist = []
    stamp("hdone")
    if cfg.wby == "helper":
        A("v_lshrrev_b32 v16, 5, v0")
        A("v_and_b32 v17, 31, v0")
        for q in range(4):
            A(f"v_add_u32 v18, {2*q}, v16")
            A("v_lshlrev_b32 v18, 1, v18")
            A("v_xor_b32 v18, v18, v17")
            A("v_lshlrev_b32 v18, 4, v18")
            A("v_lshlrev_b32 v19, 10, v16")
            A(f"v_add_u32 v{20+q}, v18, v19")
        srd(SRD_A, S_WO, 4096 * 512 * 2)
        srd(SRD_B, S_WD, 1792 * 512 * 2)
        A(f"s_lshl_b32 s{sT0}, s{sHKV}, 2")
        A(f"s_add_u32 s{sT0}, s{sT0}, s{sHC}")
        A(f"s_lshl_b32 s{sT0}, s{sT0}, 7")
        A(f"s_lshl_b32 s{sT1}, s{sJP}, 1")
        A(f"s_add_u32 s{sT0}, s{sT0}, s{sT1}")
        A(f"s_lshl_b32 s{sT0}, s{sT0}, 10")
        A(f"s_lshl_b32 s{sT1}, s{sCG}, 9")
        A(f"s_add_u32 s{sOFF}, s{sT0}, s{sT1}")
        A(f"s_lshl_b32 s{sT2}, s{sFID}, 14")
        A(f"s_add_u32 s{sT2}, s{sT2}, s{sT1}")
        if cfg.wtrig:
            lds_spin(1, 8, cfg.wtrig)
        for u in range(16):
            A(f"s_mov_b32 m0, 0x{L_WO + 1024*u:x}")
            A(f"buffer_load_dwordx4 v{20+(u&3)}, s[{SRD_A}:{SRD_A+3}], s{sOFF} offen {cfg.wnt} lds")
            if u < 15: A(f"s_add_u32 s{sOFF}, s{sOFF}, 0x2000")
        Lnw = newlab("nowd")
        A(f"s_cmp_ge_u32 s{sKGL}, 14")
        A(f"s_cbranch_scc1 {Lnw}")
        for u in range(8):
            A(f"s_mov_b32 m0, 0x{L_WD + 1024*u:x}")
            A(f"buffer_load_dwordx4 v{20+(u&3)}, s[{SRD_B}:{SRD_B+3}], s{sT2} offen {cfg.wnt} lds")
            if u < 7: A(f"s_add_u32 s{sT2}, s{sT2}, 0x800")
        A.label(Lnw)
        A.hist = []
    stamp("wissued")
    A("v_lshrrev_b32 v24, 1, v0")
    A("v_lshlrev_b32 v24, 13, v24")
    A("v_and_b32 v25, 1, v0")
    A("v_lshlrev_b32 v25, 4, v25")
    A("v_add_u32 v24, v24, v25")
    A(f"s_lshl_b32 s{sT0}, s{sJ}, 5")
    A(f"s_add_u32 s{sT0}, s{sT0}, 0x{WS_YB:x}")
    YO = 56
    for u in range(4):
        A(f"s_add_u32 s{YO+u}, s{sT0}, 0x{u*0x40000:x}")
    A("v_lshrrev_b32 v14, 4, v0")
    A("v_lshlrev_b32 v14, 10, v14")
    A("s_waitcnt lgkmcnt(0)")
    A("s_barrier")
    A("s_waitcnt vmcnt(0)")
    stamp("wland")
    srd(SRD_B, S_OUT, 4096)
    A("s_barrier")
    def y_issue():
        for u in range(4):
            A(f"buffer_load_dwordx4 v[{40+4*u}:{43+4*u}], v24, s[{SRD_WS}:{SRD_WS+3}], s{YO+u} offen sc1")
    def y_check():
        return untag([40 + 4 * u for u in range(4)], 16)
    poll_loop(y_issue, y_check)
    stamp("gathB")
    for k in range(4):
        A(f"v_add_f32 v{40+k}, v{40+k}, v{44+k}")
        A(f"v_add_f32 v{48+k}, v{48+k}, v{52+k}")
    for k in range(4):
        A(f"v_add_f32 v{40+k}, v{40+k}, v{48+k}")
    for n in (2, 4, 8):
        for k in range(4):
            A(f"v_add_f32_dpp v{40+k}, v{40+k}, v{40+k} row_ror:{n} {DPPM}")
    rows4_reduce(40, 41, 42, 43)
    A(f"v_mov_b32_dpp v41, v40 quad_perm:[1,0,3,2] {DPPM}")
    A("v_cvt_pk_bf16_f32 v40, v40, v41")
    A(f"s_lshl_b32 s{sT0}, s{sJ}, 2")
    A("s_mov_b32 exec_lo, 0x00010001")
    A("s_mov_b32 exec_hi, 0x00010001")
    A(f"buffer_store_dword v40, v14, s[{SRD_B}:{SRD_B+3}], s{sT0} offen")
    Lne = newlab("noe")
    A(f"s_cmp_lg_u32 s{sJ}, 0")
    A(f"s_cbranch_scc1 {Lne}")
    A("s_mov_b64 exec, 1")
    A(f"v_mov_b32 v15, s{sTAG}")
    A("v_mov_b32 v16, 0")
    A(f"buffer_store_dword v15, v16, s[{SRD_WS}:{SRD_WS+3}], 0 offen sc1")
    A.label(Lne)
    A("s_mov_b64 exec, -1")
    stamp("end")
    write_stamps()
    A.label("L_end")
    A("s_endpgm")
    R('.section .rodata,"a"')
    R(".p2align 6")
    R(f".amdhsa_kernel {NAME}")
    R("  .amdhsa_next_free_vgpr 168")
    R("  .amdhsa_next_free_sgpr 102")
    R("  .amdhsa_accum_offset 104")
    R("  .amdhsa_group_segment_fixed_size 0")
    R("  .amdhsa_kernarg_size 104")
    R("  .amdhsa_user_sgpr_count 2")
    R("  .amdhsa_user_sgpr_kernarg_segment_ptr 1")
    R("  .amdhsa_system_sgpr_workgroup_id_x 1")
    R(".end_amdhsa_kernel")
    return A.text(), stamp_names, A.nops

if __name__ == "__main__":
    out = sys.argv[1]
    kw = {}
    for a in sys.argv[2:]:
        k, v = a.split("=")
        if v in ("True", "False"): v = (v == "True")
        elif v.lstrip("-").isdigit(): v = int(v)
        kw[k] = v
    txt, names, nops = gen(Cfg(**kw))
    open(out, "w").write(txt)
    if kw.get("stamps"): open(out + ".names", "w").write(repr(names))
    print("wrote", out, "lines", txt.count("\n"), "nops", nops, names if kw.get("stamps") else "")
```
